```python
import torch

def _softmax(x, axis=-1):
    return torch.softmax(x, dim=axis)
def _gelu(x):
    return torch.nn.functional.gelu(x, approximate="tanh")
def _silu(x):
    return torch.nn.functional.silu(x)
def _sigmoid(x):
    return torch.sigmoid(x)
def _layernorm(x, axis=-1, eps=1e-5):
    m = x.mean(dim=axis, keepdim=True)
    v = x.var(dim=axis, keepdim=True, unbiased=False)
    return (x - m) / torch.sqrt(v + eps)
def _scatter_add(tgt, idx, src, axis=0):
    return tgt.clone().index_add_(axis, idx, src)
def _segment_sum(src, seg, n):
    out = torch.zeros((n,) + src.shape[1:], dtype=src.dtype)
    return out.index_add_(0, seg, src)
def _pad(x, pw):
    flat = tuple(v for pair in reversed(pw) for v in pair)
    return torch.nn.functional.pad(x, flat)

kernel_name = 'gated_mix__mha_block_cached__mixer_channel_mlp__decode'

def setup_inputs():

    _w = (lambda a: (lambda t: t.to(torch.bfloat16) if t.is_floating_point() else t)(torch.as_tensor(a)))
    def _A_setup():
        B, Sq, D = 8, 1, 576
        H, Sk, Dh = 32, 4096, 128
        return {
            "x": _w((lambda *s: torch.randn(*s, dtype=torch.bfloat16) * 0.05)(B, Sq, D)),
            "k_cache": _w((lambda *s: torch.randn(*s, dtype=torch.bfloat16) * 6.4)(B, H, Sk, Dh)),
            "v_cache": _w((lambda *s: torch.randn(*s, dtype=torch.bfloat16) * 0.4)(B, H, Sk, Dh)),
            "wq": _w((lambda *s: torch.randn(*s, dtype=torch.bfloat16) * 6.4)(D, H * Dh) * (D ** -0.5)),
            "wo": _w((lambda *s: torch.randn(*s, dtype=torch.bfloat16) * 0.4)(H * Dh, D) * ((H * Dh) ** -0.5)),
        }
    _A_in = _A_setup()

    def _B_setup():
        B, S, D, F = 8, 1, 576, 4608
        return {
            "x": _w((lambda *s: torch.randn(*s, dtype=torch.bfloat16) * 0.05)(B, S, D)),
            "w1": _w((lambda *s: torch.randn(*s, dtype=torch.bfloat16) * 0.8)(D, F) * (D ** -0.5)),
            "b1": _w((lambda *s: torch.randn(*s, dtype=torch.bfloat16) * 0.8)(F)),
            "w2": _w((lambda *s: torch.randn(*s, dtype=torch.bfloat16) * 0.05)(F, D) * (F ** -0.5)),
            "b2": _w((lambda *s: torch.randn(*s, dtype=torch.bfloat16) * 0.05)(D)),
        }
    _B_in = _B_setup()

    return {
        "A_x": _A_in["x"],
        "A_k_cache": _A_in["k_cache"],
        "A_v_cache": _A_in["v_cache"],
        "A_wq": _A_in["wq"],
        "A_wo": _A_in["wo"],
        "B_x": _B_in["x"],
        "B_w1": _B_in["w1"],
        "B_b1": _B_in["b1"],
        "B_w2": _B_in["w2"],
        "B_b2": _B_in["b2"],
        "gate_w": _w((lambda *s: torch.randn(*s, dtype=torch.bfloat16) * 0.05)(576) * 16.0),
    }

def reference(A_x, A_k_cache, A_v_cache, A_wq, A_wo, B_x, B_w1, B_b1, B_w2, B_b2, gate_w):
    def _A_ref(x, k_cache, v_cache, wq, wo):
        B, Sq, D = x.shape
        H, Dh = 32, 128
        q = (lambda x, *d: x.permute(*d))((x @ wq).reshape(B, Sq, H, Dh), 0, 2, 1, 3)
        scores = torch.einsum("bhqd,bhkd->bhqk", q, k_cache) * (Dh ** -0.5)
        p = _softmax(scores, axis=-1)
        o = torch.einsum("bhqk,bhkd->bhqd", p, v_cache)
        return (lambda x, *d: x.permute(*d))(o, 0, 2, 1, 3).reshape(B, Sq, H * Dh) @ wo

    def _B_ref(x, w1, b1, w2, b2):
        y = _layernorm(x, axis=-1)
        h = _gelu(torch.einsum("bsd,df->bsf", y, w1) + b1)
        return torch.einsum("bsf,fd->bsd", h, w2) + b2

    x = A_x
    g = _sigmoid((x * gate_w).sum(-1, keepdims=True))
    a = _A_ref(x, A_k_cache, A_v_cache, A_wq, A_wo)
    b = _B_ref(x, B_w1, B_b1, B_w2, B_b2)
    return g * a + (1 - g) * b
```

```python
import re

TRANS = ("v_exp_f32", "v_log_f32", "v_rcp_f32", "v_rsq_f32", "v_sqrt_f32", "v_sin_f32", "v_cos_f32", "v_rcp_iflag_f32")

def _regs(tok):
    tok = tok.strip()
    neg = tok.lstrip("-")
    if neg.startswith("abs(") and neg.endswith(")"):
        neg = neg[4:-1]
    if neg.startswith("|") and neg.endswith("|"):
        neg = neg[1:-1]
    m = re.fullmatch(r"([vsa])(\d+)", neg)
    if m:
        return [(m.group(1), int(m.group(2)))]
    m = re.fullmatch(r"([vsa])\[(\d+):(\d+)\]", neg)
    if m:
        return [(m.group(1), i) for i in range(int(m.group(2)), int(m.group(3)) + 1)]
    if neg == "vcc":
        return [("s", "vcc")]
    if neg in ("vcc_lo", "vcc_hi"):
        return [("s", "vcc")]
    if neg == "exec":
        return [("s", "exec")]
    if neg == "m0":
        return [("s", "m0")]
    return []

class Ins:
    def __init__(self, text):
        self.text = text
        t = text.split(";")[0].strip()
        self.label = None
        self.mn = None
        self.ops = []
        self.mods = ""
        if not t:
            return
        if t.endswith(":"):
            self.label = t[:-1]
            return
        if t.startswith("."):
            return
        parts = t.split(None, 1)
        self.mn = parts[0]
        rest = parts[1] if len(parts) > 1 else ""
        ops, cur, depth = [], "", 0
        for ch in rest:
            if ch == "[": depth += 1
            if ch == "]": depth -= 1
            if ch == "," and depth == 0:
                ops.append(cur.strip()); cur = ""
            else:
                cur += ch
        if cur.strip():
            ops.append(cur.strip())
        if ops:
            last = ops[-1].split(None, 1)
            ops[-1] = last[0]
            self.mods = last[1] if len(last) > 1 else ""
        self.ops = ops
        self.analyze()

    def analyze(self):
        mn = self.mn
        base = re.sub(r"_(e32|e64|dpp|sdwa)$", "", mn)
        self.base = base
        self.valu = mn.startswith("v_")
        self.salu = mn.startswith("s_") and not mn.startswith(("s_load", "s_waitcnt", "s_nop", "s_barrier", "s_branch", "s_cbranch", "s_endpgm", "s_memtime", "s_memrealtime", "s_sleep", "s_setprio", "s_atomic"))
        self.vmem = mn.startswith(("buffer_", "global_", "flat_"))
        self.ds = mn.startswith("ds_")
        self.trans = base in TRANS
        self.dot = base.startswith("v_dot")
        self.mfma = base.startswith("v_mfma")
        self.dpp = mn.endswith("_dpp") or any(k in self.mods for k in ("row_", "quad_perm", "wave_"))
        self.sdwa = mn.endswith("_sdwa") or "dst_sel" in self.mods
        self.permlane = base.startswith("v_permlane")
        self.readlane = base in ("v_readlane_b32", "v_readfirstlane_b32")
        self.writelane = base == "v_writelane_b32"
        ops = [_regs(o) for o in self.ops]
        defs, uses = [], []
        if self.valu:
            if self.permlane:
                defs = ops[0] + ops[1]; uses = ops[0] + ops[1]
            elif base.startswith("v_cmp"):
                defs = ops[0]; uses = sum(ops[1:], [])
                if base.startswith("v_cmpx"): defs = defs + [("s", "exec")]
            elif base in ("v_add_co_u32", "v_sub_co_u32", "v_addc_co_u32", "v_subb_co_u32", "v_subrev_co_u32", "v_mad_u64_u32"):
                defs = ops[0] + ops[1]; uses = sum(ops[2:], [])
            else:
                defs = ops[0]; uses = sum(ops[1:], [])
                if base in ("v_fmac_f32", "v_dot2c_f32_bf16", "v_dot2c_f32_f16", "v_pk_fmac_f16", "v_writelane_b32") or self.dpp or self.sdwa:
                    uses = uses + ops[0]
                if base == "v_cndmask_b32" and len(self.ops) == 3:
                    uses = uses + [("s", "vcc")]
        elif self.vmem:
            if "store" in mn:
                uses = sum(ops, [])
            elif "atomic" in mn:
                if "sc0" in self.mods and mn.startswith("global_"):
                    defs = ops[0]; uses = sum(ops[1:], [])
                elif "sc0" in self.mods:
                    defs = ops[0]; uses = sum(ops, [])
                else:
                    uses = sum(ops, [])
            elif mn in ("buffer_wbl2", "buffer_inv"):
                pass
            elif "lds" in self.mods.split() or "_lds_" in mn:
                uses = sum(ops, []) + [("s", "m0")]
            else:
                defs = ops[0]; uses = sum(ops[1:], [])
        elif self.ds:
            if mn.startswith(("ds_read", "ds_bpermute", "ds_permute", "ds_swizzle")) or "_rtn" in mn:
                defs = ops[0]; uses = sum(ops[1:], [])
            else:
                uses = sum(ops, [])
        elif mn.startswith("s_"):
            if mn.startswith(("s_cmp", "s_waitcnt", "s_nop", "s_barrier", "s_branch", "s_cbranch", "s_endpgm", "s_sleep", "s_setprio")):
                uses = sum(ops, [])
            else:
                defs = ops[0] if ops else []; uses = sum(ops[1:], [])
                if "saveexec" in mn: defs = defs + [("s", "exec")]; uses = uses + [("s", "exec")]
        self.defs = set(defs); self.uses = set(uses)
        self.states = 1
        if mn == "s_nop":
            self.states = int(self.ops[0], 0) + 1
        self.wide_store = self.vmem and "store" in mn and ("x3" in mn or "x4" in mn)
        if self.wide_store:
            self.store_data = set(_regs(self.ops[0] if mn.startswith("buffer_") else self.ops[1]))

def need(prod, cons):
    n = 0
    pv = {r for r in prod.defs if r[0] in "va"}
    ps = {r for r in prod.defs if r[0] == "s"}
    cu = cons.uses; cd = cons.defs
    if prod.valu and not prod.mfma:
        if pv & cu:
            if cons.valu and cons.dpp: n = max(n, 2)
            if cons.readlane: n = max(n, 1)
            if cons.permlane: n = max(n, 2)
            if cons.mfma: n = max(n, 2)
            if prod.trans and cons.valu and not cons.trans: n = max(n, 1)
            if prod.trans and (cons.vmem or cons.ds): n = max(n, 1)
            if prod.sdwa and cons.valu: n = max(n, 1)
        if prod.dot and (pv & (cu | cd)):
            if cons.base == prod.base:
                srcab = set()
                for o in cons.ops[1:3]: srcab |= set(_regs(o))
                if pv & srcab: n = max(n, 3)
            else:
                n = max(n, 3)
        if ps & cu:
            if cons.valu:
                n = max(n, 2)
                if cons.readlane or cons.writelane:
                    n = max(n, 4)
            if cons.vmem: n = max(n, 5)
            if ("s", "exec") in ps and cons.dpp: n = max(n, 5)
        if ("s", "exec") in ps:
            if cons.readlane or cons.writelane or cons.permlane or cons.mfma: n = max(n, 4)
            if cons.dpp: n = max(n, 5)
    if prod.mfma:
        passes = 8 if "32x32" in prod.base else 4
        if pv & (cu | cd):
            if cons.mfma:
                c = set(_regs(cons.ops[3])); ab = set(_regs(cons.ops[1])) | set(_regs(cons.ops[2]))
                if pv & ab: n = max(n, 8 if passes == 4 else 12)
                elif (pv & c) and not (c == pv and cons.base == prod.base): n = max(n, 6 if passes == 4 else 10)
            else:
                n = max(n, 8 if passes == 4 else 12)
        c = set(_regs(prod.ops[3]))
        if cons.valu and not cons.mfma and (c & cd): n = max(n, 3 if passes == 4 else 7)
    if prod.wide_store and (prod.store_data & cd):
        n = max(n, 2 if cons.valu else 1)
    if prod.salu and ("s", "m0") in prod.defs and ("s", "m0") in cu and (cons.vmem or cons.ds): n = max(n, 1)
    return n

class Asm:
    def __init__(self):
        self.lines = []
    def __call__(self, s):
        for l in s.split("\n"):
            self.lines.append(l)
    def fix(self, verbose=False):
        out = []
        inserted = 0
        def hist_states(seq, cons):
            extra = 0; dist = 0
            for p in reversed(seq):
                if p.mn is None: continue
                nd = need(p, cons)
                if nd > dist: extra = max(extra, nd - dist)
                dist += p.states
                if dist >= 12: break
            return extra
        for l in self.lines:
            ins = Ins(l)
            if ins.mn is not None:
                e = hist_states(out, ins)
                if e > 0:
                    out.append(Ins(f"  s_nop {e-1}")); inserted += 1
                    if verbose: print("nop", e, "before", l.strip())
            out.append(ins)
        labels = {i.label: k for k, i in enumerate(out) if i.label}
        problems = []
        for k, i in enumerate(out):
            if i.mn and (i.mn.startswith("s_cbranch") or i.mn == "s_branch"):
                tgt = labels.get(i.ops[0])
                if tgt is None: continue
                pre = [p for p in out[max(0, k - 14):k + 1]]
                seq = list(pre)
                cnt = 0
                for c in out[tgt:tgt + 30]:
                    if c.mn is None: continue
                    e = hist_states(seq, c)
                    if e > 0: problems.append((i.text, c.text, e))
                    seq.append(c); cnt += 1
                    if cnt >= 12 or c.mn in ("s_branch", "s_endpgm"): break
        for p in problems: print("BRANCH-EDGE HAZARD", p)
        assert not problems
        self.inserted = inserted
        return "\n".join(i.text for i in out) + "\n"
```

```python
import sys, math
from asmlib import Asm

KN = "gated_mix__mha_block_cached__mixer_channel_mlp__decode_kernel"

HEADER = open("gated_mix__mha_block_cached__mixer_channel_mlp__decode.s.ref").read().split("; Override launch")[0]

QP   = 0
OP   = 4096
SC   = 6144
ML   = SC + 16384
GATE = ML + 32
HCNT = GATE + 4
YL   = ML + 64
HP   = YL + 2560
OUTP = HP + 6912
LDS_TOTAL = OUTP + 18432

def gen(R=5, kvflags="nt", stamps=False, dbg=False, HR=8, atom_flags="sc0 sc1", D0=None):
    A = Asm()
    S = 8
    assert R <= S - 1 or R == S
    A(HEADER.rstrip())
    A(f"; @launch grid=(256,1,1) block=(512,1,1) lds={LDS_TOTAL}")
    A('.amdgcn_target "amdgcn-amd-amdhsa--gfx950"')
    A(".text"); A(f".globl {KN}"); A(".p2align 8"); A(f".type {KN},@function"); A(f"{KN}:")
    sWV, sH, sB, sBH = "s3", "s4", "s5", "s6"
    KV = "s[44:47]"; WQ = "s[48:51]"; XA = "s[52:55]"; XB = "s[56:59]"; GW = "s[60:63]"; W1 = "s[64:67]"
    B1 = "s[68:71]"; W2 = "s[72:75]"; WO = "s[76:79]"; B2 = "s[80:83]"; WS = "s[84:87]"; OUT = "s[88:91]"
    sMASK = "s92"; sM2 = "s[94:95]"; sM1 = "s[96:97]"
    def srd(q, lo, hi, size):
        b = int(q[2:q.index(":")])
        return b
    vLane, vL16, vG, vC = "v0", "v2", "v3", "v4"
    ACC = 8
    T = 16
    WT = 24
    RING = 96
    OA = 128
    SCR = 160
    Q = 176
    vP, vPn = "v180", "v181"
    vSC = "v182"
    AV = 184
    PL = 192
    ring = lambda s: f"v[{RING+4*(s%S)}:{RING+4*(s%S)+3}]"
    wt = lambda i: f"v[{WT+4*i}:{WT+4*i+3}]"

    A("  s_cmp_ge_u32 s2, 256")
    A("  s_cbranch_scc1 L_end")
    A("  s_load_dwordx16 s[16:31], s[0:1], 0")
    A("  s_load_dwordx8 s[32:39], s[0:1], 64")
    A("  s_load_dwordx4 s[40:43], s[0:1], 96")
    if stamps: A("  s_memrealtime s[98:99]")
    A("  v_lshrrev_b32 v1, 6, v0")
    A("  v_and_b32 v0, 63, v0")
    A("  v_lshlrev_b32 v2, 4, v0")
    A("  v_readfirstlane_b32 s3, v1")
    A("  s_and_b32 s4, s2, 7")
    A("  s_lshl_b32 s4, s4, 2")
    A("  s_bfe_u32 s7, s2, 0x20003")
    A("  s_or_b32 s4, s4, s7")
    A("  s_lshr_b32 s5, s2, 5")
    A("  s_lshl_b32 s6, s5, 5")
    A("  s_or_b32 s6, s6, s4")
    A("  s_lshl_b32 s9, s6, 20")
    A("  s_lshl_b32 s13, s3, 10")
    A("  s_mov_b32 s46, 0x100000"); A("  s_mov_b32 s47, 0x20000")
    A("  v_lshrrev_b32 v3, 4, v0")
    A("  v_and_b32 v4, 15, v0")
    A("  s_mov_b32 s92, 0xffff0000")
    A("  s_mov_b32 s8, s13")
    A("  s_waitcnt lgkmcnt(0)")
    A("  s_add_u32 s44, s18, s9"); A("  s_addc_u32 s45, s19, 0")
    A("  s_add_u32 s14, s20, s9"); A("  s_addc_u32 s15, s21, 0")
    A("  s_mul_i32 s7, s5, 1152")
    A("  s_add_u32 s52, s16, s7"); A("  s_addc_u32 s53, s17, 0"); A("  s_mov_b32 s54, 1152"); A("  s_mov_b32 s55, 0x20000")
    A("  s_cmp_ge_u32 s3, 4")
    A("  s_cbranch_scc1 L_hpre")
    for j in range(R):
        A(f"  buffer_load_dwordx4 {ring(j)}, v2, {KV}, s8 offen {kvflags}")
        A("  s_add_u32 s8, s8, 4096")
    A("  s_branch L_q")
    HX = 144
    A("L_hpre:")
    A("  s_mov_b32 s60, s36"); A("  s_mov_b32 s61, s37"); A("  s_mov_b32 s62, 1152"); A("  s_mov_b32 s63, 0x20000")
    A("  s_mov_b32 s68, s30"); A("  s_mov_b32 s69, s31"); A("  s_mov_b32 s70, 9216"); A("  s_mov_b32 s71, 0x20000")
    A("  v_lshlrev_b32 v1, 2, v0")
    for k in range(5):
        A(f"  buffer_load_dword v{HX+5+k}, v1, {XA}, 0 offen offset:{256*k}")
    for k in range(5):
        A(f"  buffer_load_dword v{HX+10+k}, v1, {GW}, 0 offen offset:{256*k}")
    A("  s_mul_i32 s10, s4, 288")
    A("  s_sub_u32 s11, s3, 4")
    A("  s_mul_i32 s11, s11, 72")
    A("  s_add_u32 s10, s10, s11")
    A("  v_lshlrev_b32 v1, 1, v0")
    A(f"  buffer_load_ushort v{HX+15}, v1, {B1}, s10 offen")
    A("L_q:")
    A("  s_mov_b32 s48, s22"); A("  s_mov_b32 s49, s23"); A(f"  s_mov_b32 s50, {576*8192}"); A("  s_mov_b32 s51, 0x20000")
    A("  v_lshlrev_b32 v5, 3, v4")
    A("  v_lshl_add_u32 v5, v3, 1, v5")
    A("  s_mul_i32 s11, s3, 144")
    A(f"  buffer_load_ushort v6, v5, {XA}, s11 offen")
    A(f"  buffer_load_ushort v7, v5, {XA}, s11 offen offset:128")
    A("  v_lshlrev_b32 v5, 4, v4")
    A("  v_lshl_add_u32 v5, v3, 13, v5")
    A(f"  s_mul_i32 s10, s3, {72*8192}")
    A("  s_lshl_b32 s11, s4, 8")
    A("  s_add_u32 s10, s10, s11")
    for i in range(18):
        A(f"  buffer_load_dwordx4 {wt(i)}, v5, {WQ}, s10 offen")
        if i < 17: A("  s_add_u32 s10, s10, 32768")
    A("  s_mov_b32 s76, s24"); A("  s_mov_b32 s77, s25"); A(f"  s_mov_b32 s78, {4096*1152}"); A("  s_mov_b32 s79, 0x20000")
    A("  s_mov_b32 s80, s34"); A("  s_mov_b32 s81, s35"); A("  s_mov_b32 s82, 1152"); A("  s_mov_b32 s83, 0x20000")
    A("  s_mov_b32 s84, s42"); A("  s_mov_b32 s85, s43"); A("  s_mov_b32 s86, 0x40000000"); A("  s_mov_b32 s87, 0x20000")
    A("  s_mov_b32 s88, s38"); A("  s_mov_b32 s89, s39"); A("  s_mov_b32 s90, 9216"); A("  s_mov_b32 s91, 0x20000")
    A("  v_and_b32 v1, 2, v0"); A(f"  v_cmp_ne_u32 {sM2}, 0, v1")
    A("  v_and_b32 v1, 1, v0"); A(f"  v_cmp_ne_u32 {sM1}, 0, v1")
    for k in range(16): A(f"  v_mov_b32 v{OA+k}, 0")
    A("  s_waitcnt vmcnt(18)")
    A("  v_lshlrev_b32 v6, 16, v6"); A("  v_lshlrev_b32 v7, 16, v7")
    def unpack(r):
        for k in range(4):
            A(f"  v_lshlrev_b32 v{T+2*k}, 16, v{r+k}")
            A(f"  v_and_b32 v{T+2*k+1}, {sMASK}, v{r+k}")
    for i in range(18):
        A(f"  s_waitcnt vmcnt({17-i})")
        unpack(WT + 4 * i)
        src = "v6" if i < 16 else "v7"
        for k in range(8):
            op = "v_mul_f32_dpp" if i == 0 else "v_fmac_f32_dpp"
            A(f"  {op} v{ACC+k}, {src}, v{T+k} row_newbcast:{i%16} row_mask:0xf bank_mask:0xf")
    def reduce_g(a):
        for j in range(4): A(f"  v_permlane32_swap_b32 v{a+j}, v{a+j+4}")
        for j in range(4): A(f"  v_add_f32 v{a+j}, v{a+j}, v{a+j+4}")
        for j in range(2): A(f"  v_permlane16_swap_b32 v{a+j}, v{a+j+2}")
        for j in range(2): A(f"  v_add_f32 v{a+j}, v{a+j}, v{a+j+2}")
    reduce_g(ACC)
    A("  v_lshlrev_b32 v5, 5, v4")
    A("  v_lshl_add_u32 v5, v3, 3, v5")
    A("  s_lshl_b32 s7, s3, 9")
    A("  v_add_u32 v183, s7, v5")
    A(f"  ds_write_b64 v183, v[{ACC}:{ACC+1}] offset:{QP}")
    A("  v_mov_b32 v1, 0")
    A(f"  v_mov_b32 v5, {HCNT}")
    A("  ds_write_b32 v5, v1")
    A("  s_mul_i32 s11, s3, 144")
    A("  v_lshlrev_b32 v1, 3, v0")
    A(f"  buffer_load_dwordx2 v[228:229], v1, {B2}, s11 offen")
    A("  s_waitcnt lgkmcnt(0)")
    A("  s_barrier")
    A("  s_cmp_ge_u32 s3, 4")
    A("  s_cbranch_scc1 L_helper")

    A("  v_lshlrev_b32 v5, 5, v4")
    for w in range(8):
        A(f"  ds_read_b128 v[{WT+8*w}:{WT+8*w+3}], v5 offset:{QP+512*w}")
        A(f"  ds_read_b128 v[{WT+8*w+4}:{WT+8*w+7}], v5 offset:{QP+512*w+16}")
    for w in range(1, 8):
        A(f"  s_waitcnt lgkmcnt({min(15, 2*(7-w))})")
        for k in range(8):
            A(f"  v_add_f32 v{WT+k}, v{WT+k}, v{WT+8*w+k}")
    for k in range(4):
        A(f"  v_cvt_pk_bf16_f32 v{Q+k}, v{WT+2*k}, v{WT+2*k+1}")
    if dbg:
        A("  s_cmp_lg_u32 s3, 0"); A("  s_cbranch_scc1 L_dq")
        A("  s_lshl_b32 s7, s6, 8"); A("  s_add_u32 s7, s7, 0x30000000")
        A("  v_lshlrev_b32 v1, 4, v4")
        A(f"  buffer_store_dwordx4 v[{Q}:{Q+3}], v1, {WS}, s7 offen")
        A("  s_waitcnt vmcnt(0)")
        A("L_dq:")
    A(f"  s_lshl_b32 s7, s3, 12")
    A(f"  v_lshl_add_u32 {vSC}, v0, 2, s7")
    A("  s_mov_b32 s12, 0")
    A("L_kloop:")
    for u in range(16):
        nb = 1 if dbg is None else 0
        A(f"  s_waitcnt vmcnt({R-1})")
        if u + R == 16:
            A("  s_cmp_eq_u32 s12, 15")
            A("  s_cselect_b32 s44, s14, s44"); A("  s_cselect_b32 s45, s15, s45"); A("  s_cselect_b32 s8, s13, s8")
        A(f"  buffer_load_dwordx4 {ring(u+R)}, v2, {KV}, s8 offen {kvflags}")
        A("  s_add_u32 s8, s8, 4096")
        r = RING + 4 * (u % S)
        for k in range(4):
            c = "0" if k == 0 else f"v{SCR+u}"
            A(f"  v_dot2_f32_bf16 v{SCR+u}, v{r+k}, v{Q+k}, {c}")
    a = lambda i: f"v{SCR+i}"
    for i in range(8):
        A(f"  v_add_f32_dpp {a(i)}, {a(i)}, {a(i)} row_ror:8 row_mask:0xf bank_mask:0x3")
        A(f"  v_add_f32_dpp {a(i)}, {a(i+8)}, {a(i+8)} row_ror:8 row_mask:0xf bank_mask:0xc")
    for i in range(4):
        A(f"  v_add_f32_dpp {a(i)}, {a(i)}, {a(i)} row_shl:4 row_mask:0xf bank_mask:0x5")
        A(f"  v_add_f32_dpp {a(i)}, {a(i+4)}, {a(i+4)} row_shr:4 row_mask:0xf bank_mask:0xa")
    for i in range(2):
        A(f"  v_cndmask_b32 v{T+i}, {a(i)}, {a(i+2)}, {sM2}")
        A(f"  v_cndmask_b32 v{T+2+i}, {a(i+2)}, {a(i)}, {sM2}")
    for i in range(2):
        A(f"  v_add_f32_dpp v{T+i}, v{T+2+i}, v{T+i} quad_perm:[2,3,0,1] row_mask:0xf bank_mask:0xf")
    A(f"  v_cndmask_b32 v{T+4}, v{T}, v{T+1}, {sM1}")
    A(f"  v_cndmask_b32 v{T+5}, v{T+1}, v{T}, {sM1}")
    A(f"  v_add_f32_dpp v{T+4}, v{T+5}, v{T+4} quad_perm:[1,0,3,2] row_mask:0xf bank_mask:0xf")
    A(f"  ds_write_b32 {vSC}, v{T+4} offset:{SC}")
    A(f"  v_add_u32 {vSC}, 256, {vSC}")
    A("  s_add_u32 s12, s12, 1")
    A("  s_cmp_lt_u32 s12, 16")
    A("  s_cbranch_scc1 L_kloop")
    A(f"  v_subrev_u32 {vSC}, 4096, {vSC}")
    A("  s_waitcnt lgkmcnt(0)")
    for i in range(16):
        A(f"  ds_read_b32 {a(i)}, {vSC} offset:{SC+256*i}")
    A("  s_waitcnt lgkmcnt(0)")
    if dbg:
        A("  s_lshl_b32 s7, s6, 2"); A("  s_add_u32 s7, s7, s3"); A("  s_lshl_b32 s7, s7, 12"); A("  s_add_u32 s7, s7, 0x31000000")
        A("  v_lshlrev_b32 v1, 2, v0")
        for i in range(16):
            A(f"  buffer_store_dword {a(i)}, v1, {WS}, s7 offen offset:{256*i}")
        A("  s_waitcnt vmcnt(0)")
    t0, t1 = f"v{T}", f"v{T+1}"
    A(f"  v_max3_f32 {t0}, {a(0)}, {a(1)}, {a(2)}")
    for i in range(3, 15, 2):
        A(f"  v_max3_f32 {t0}, {t0}, {a(i)}, {a(i+1)}")
    A(f"  v_max_f32 {t0}, {t0}, {a(15)}")
    def allreduce(op, v, tmp):
        for sh in (8, 4, 2, 1):
            A(f"  {op}_dpp {v}, {v}, {v} row_ror:{sh} row_mask:0xf bank_mask:0xf")
        A(f"  v_mov_b32 {tmp}, {v}"); A(f"  v_permlane16_swap_b32 {v}, {tmp}"); A(f"  {op} {v}, {v}, {tmp}")
        A(f"  v_mov_b32 {tmp}, {v}"); A(f"  v_permlane32_swap_b32 {v}, {tmp}"); A(f"  {op} {v}, {v}, {tmp}")
    allreduce("v_max_f32", t0, t1)
    SC2 = (128 ** -0.5) * math.log2(math.e)
    import struct
    f2u = lambda x: "0x%08x" % struct.unpack("<I", struct.pack("<f", x))[0]
    A(f"  s_mov_b32 s7, {f2u(SC2)}")
    A(f"  v_mul_f32 {t0}, s7, {t0}")
    for i in range(16):
        A(f"  v_fma_f32 {a(i)}, {a(i)}, s7, -{t0}")
    for i in range(16):
        A(f"  v_exp_f32 {a(i)}, {a(i)}")
    for i in range(16):
        A(f"  ds_write_b32 {vSC}, {a(i)} offset:{SC+256*i}")
    A(f"  v_add_f32 v{T+2}, {a(0)}, {a(1)}")
    for i in range(2, 16):
        A(f"  v_add_f32 v{T+2}, v{T+2}, {a(i)}")
    allreduce("v_add_f32", f"v{T+2}", f"v{T+3}")
    A(f"  v_mov_b32 v{T+1}, v{T+2}")
    A("  s_lshl_b32 s7, s3, 3")
    A(f"  v_mov_b32 v1, s7")
    A(f"  ds_write_b64 v1, v[{T}:{T+1}] offset:{ML}")
    A(f"  v_mov_b32 {vP}, {a(0)}")
    for k in range(8): A(f"  v_mov_b32 v{AV+k}, 0")
    A("  s_mov_b32 s12, 0")
    vm = []
    def vstep(u, issue=True):
        r = RING + 4 * (u % S)
        unpack(r)
        for k in range(8):
            A(f"  v_fmac_f32_dpp v{AV+k}, {vP}, v{T+k} row_newbcast:{u} row_mask:0xf bank_mask:0xf")
    A("L_vloop:")
    A(f"  v_add_u32 {vSC}, 256, {vSC}")
    A(f"  ds_read_b32 {vPn}, {vSC} offset:{SC}")
    for u in range(16):
        A(f"  s_waitcnt vmcnt({R-1})")
        A(f"  buffer_load_dwordx4 {ring(u+R)}, v2, {KV}, s8 offen {kvflags}")
        A("  s_add_u32 s8, s8, 4096")
        vstep(u)
    A("  s_waitcnt lgkmcnt(0)")
    A(f"  v_mov_b32 {vP}, {vPn}")
    A("  s_add_u32 s12, s12, 1")
    A("  s_cmp_lt_u32 s12, 15")
    A("  s_cbranch_scc1 L_vloop")
    def wo_setup():
        A("  s_lshl_b32 s10, s4, 7"); A("  s_lshl_b32 s11, s3, 4"); A("  s_add_u32 s10, s10, s11"); A("  s_mul_i32 s10, s10, 1152")
        A("  v_lshrrev_b32 v5, 3, v0"); A("  v_mul_u32_u24 v5, 2304, v5")
        A("  v_and_b32 v1, 7, v0"); A("  v_lshl_add_u32 v5, v1, 4, v5")
    def wo_load(i):
        if i < 16:
            A(f"  buffer_load_dwordx4 {wt(i)}, v2, {WO}, s10 offen")
            A("  s_add_u32 s10, s10, 1152")
        elif i == 16:
            A(f"  s_sub_u32 s10, s10, {16*1152}")
            A(f"  buffer_load_dwordx4 {wt(16)}, v5, {WO}, s10 offen offset:1024")
        else:
            A(f"  buffer_load_dwordx4 {wt(17)}, v5, {WO}, s10 offen offset:{1024+1152}")
    wo_setup()
    queue = [("v", u) for u in range(R)]
    nwo = 0
    for u in range(16):
        idx = queue.index(("v", u))
        A(f"  s_waitcnt vmcnt({len(queue)-1-idx})")
        queue = queue[idx + 1:]
        if u + R < 16:
            A(f"  buffer_load_dwordx4 {ring(u+R)}, v2, {KV}, s8 offen {kvflags}")
            A("  s_add_u32 s8, s8, 4096")
            queue.append(("v", u + R))
        for _ in range(2):
            if nwo < 18:
                wo_load(nwo); queue.append(("w", nwo)); nwo += 1
        vstep(u)
    reduce_g(AV)
    A(f"  ds_write_b64 v183, v[{AV}:{AV+1}] offset:{OP}")
    A("  s_branch L_tail")

    A("L_helper:")
    A("  s_sub_u32 s12, s3, 4")
    X = SCR
    for k in range(5):
        A(f"  v_lshlrev_b32 v{X+2*k}, 16, v{HX+5+k}")
        A(f"  v_and_b32 v{X+2*k+1}, {sMASK}, v{HX+5+k}")
    A(f"  v_add_f32 {t0}, v{X}, v{X+1}")
    for k in range(2, 10): A(f"  v_add_f32 {t0}, {t0}, v{X+k}")
    allreduce("v_add_f32", t0, t1)
    A(f"  v_mul_f32 {t0}, {f2u(1.0/576)}, {t0}")
    for k in range(10): A(f"  v_sub_f32 v{X+k}, v{X+k}, {t0}")
    A("  v_cmp_gt_u32 vcc, 32, v0")
    A(f"  v_cndmask_b32 v{X+8}, 0, v{X+8}, vcc"); A(f"  v_cndmask_b32 v{X+9}, 0, v{X+9}, vcc")
    A(f"  v_mul_f32 {t0}, v{X}, v{X}")
    for k in range(1, 10): A(f"  v_fmac_f32 {t0}, v{X+k}, v{X+k}")
    allreduce("v_add_f32", t0, t1)
    A(f"  v_mov_b32 {t1}, {f2u(1e-5)}")
    A(f"  v_fmac_f32 {t1}, {f2u(1.0/576)}, {t0}")
    A(f"  v_rsq_f32 {t1}, {t1}")
    for k in range(10): A(f"  v_mul_f32 v{X+k}, v{X+k}, {t1}")
    A("  v_lshlrev_b32 v1, 3, v0")
    for k in range(5):
        A(f"  ds_write_b64 v1, v[{X+2*k}:{X+2*k+1}] offset:{YL+512*k}")
    A(f"  v_dot2_f32_bf16 {t0}, v{HX+5}, v{HX+10}, 0")
    for k in range(1, 5): A(f"  v_dot2_f32_bf16 {t0}, v{HX+5+k}, v{HX+10+k}, {t0}")
    allreduce("v_add_f32", t0, t1)
    A(f"  v_mul_f32 {t0}, {f2u(-math.log2(math.e))}, {t0}")
    A(f"  v_exp_f32 {t0}, {t0}")
    A(f"  v_add_f32 {t0}, 1.0, {t0}")
    A(f"  v_rcp_f32 v179, {t0}")
    A(f"  v_sub_f32 v178, 1.0, v179")
    A(f"  v_mov_b32 v1, {GATE}")
    A("  ds_write_b32 v1, v179")
    A("  v_mul_u32_u24 v5, 57, v0"); A("  v_lshrrev_b32 v5, 10, v5")
    A("  v_mul_u32_u24 v6, 18, v5"); A("  v_sub_u32 v6, v0, v6")
    A("  v_mul_u32_u24 v7, 9216, v5"); A("  v_lshl_add_u32 v7, v6, 4, v7")
    A("  s_mov_b32 s64, s28"); A("  s_mov_b32 s65, s29"); A(f"  s_mov_b32 s66, {576*9216}"); A("  s_mov_b32 s67, 0x20000")
    A(f"  s_mul_i32 s10, s12, {144*9216}"); A("  s_mul_i32 s11, s4, 288"); A("  s_add_u32 s10, s10, s11")
    A("  s_mul_i32 s11, s12, 576")
    A("  v_lshl_add_u32 v1, v5, 2, s11")
    HRW = 8
    hring = lambda s: f"v[{RING+4*s}:{RING+4*s+3}]"
    for u in range(HRW):
        A(f"  buffer_load_dwordx4 {hring(u)}, v7, {W1}, s10 offen")
        A("  s_add_u32 s10, s10, 27648")
    for k in range(8): A(f"  v_mov_b32 v{ACC+k}, 0")
    A("  s_mov_b32 s11, 0")
    A("  s_waitcnt lgkmcnt(0)")
    A("L_w1:")
    for u in range(HRW):
        A(f"  ds_read_b32 v{SCR+u}, v1 offset:{YL+12*u}")
    A(f"  v_add_u32 v1, {12*HRW}, v1")
    A(f"  s_cmp_eq_u32 s11, {48//HRW-1}")
    A("  s_cselect_b32 s10, 0x40000000, s10")
    A("  s_waitcnt lgkmcnt(0)")
    for u in range(HRW):
        A(f"  s_waitcnt vmcnt({HRW-1})")
        unpack(RING + 4 * u)
        A(f"  buffer_load_dwordx4 {hring(u)}, v7, {W1}, s10 offen")
        A("  s_add_u32 s10, s10, 27648")
        for k in range(8): A(f"  v_fmac_f32 v{ACC+k}, v{SCR+u}, v{T+k}")
    A("  s_add_u32 s11, s11, 1")
    A(f"  s_cmp_lt_u32 s11, {48//HRW}")
    A("  s_cbranch_scc1 L_w1")
    A("  s_mul_i32 s11, s12, 3")
    A("  v_add_u32 v1, s11, v5"); A("  v_mul_u32_u24 v1, 576, v1"); A("  v_lshl_add_u32 v1, v6, 5, v1")
    A("  v_cmp_gt_u32 vcc, 54, v0")
    A("  s_and_saveexec_b64 s[10:11], vcc")
    A(f"  ds_write_b128 v1, v[{ACC}:{ACC+3}] offset:{HP}")
    A(f"  ds_write_b128 v1, v[{ACC+4}:{ACC+7}] offset:{HP+16}")
    A("  s_mov_b64 exec, 1")
    A(f"  v_mov_b32 v1, {HCNT}"); A("  v_mov_b32 v5, 1")
    A("  ds_add_u32 v1, v5")
    A("  s_mov_b64 exec, -1")
    A(f"  v_mov_b32 v1, {HCNT}")
    A("L_hspin:")
    A("  ds_read_b32 v5, v1")
    A("  s_waitcnt lgkmcnt(0)")
    A("  v_readfirstlane_b32 s10, v5")
    A("  s_cmp_ge_u32 s10, 4")
    A("  s_cbranch_scc1 L_hgo")
    A("  s_sleep 4")
    A("  s_branch L_hspin")
    A("L_hgo:")
    A("  s_mul_i32 s11, s12, 144")
    A("  v_min_u32 v1, 35, v0")
    A("  v_lshl_add_u32 v1, v1, 2, s11")
    for k in range(12):
        A(f"  ds_read_b32 v{SCR+k}, v1 offset:{HP+576*k}")
    A(f"  v_lshlrev_b32 {t0}, 16, v{HX+15}")
    A("  s_waitcnt lgkmcnt(0)")
    for k in range(12): A(f"  v_add_f32 {t0}, {t0}, v{SCR+k}")
    k0 = math.sqrt(2 / math.pi)
    A(f"  v_mul_f32 {t1}, {t0}, {t0}")
    A(f"  v_mov_b32 v{T+2}, {f2u(-2*k0*math.log2(math.e))}")
    A(f"  v_fmac_f32 v{T+2}, {f2u(-2*k0*0.044715*math.log2(math.e))}, {t1}")
    A(f"  v_mul_f32 v{T+2}, v{T+2}, {t0}")
    A(f"  v_exp_f32 v{T+2}, v{T+2}")
    A(f"  v_add_f32 v{T+2}, 1.0, v{T+2}")
    A(f"  v_rcp_f32 v{T+2}, v{T+2}")
    A(f"  v_mul_f32 {t0}, {t0}, v{T+2}")
    A(f"  v_mul_f32 {t0}, v178, {t0}")
    A("  v_cmp_gt_u32 vcc, 36, v0")
    A(f"  v_cndmask_b32 v177, 0, {t0}, vcc")
    if dbg:
        A("  s_lshl_b32 s7, s6, 2"); A("  s_add_u32 s7, s7, s12"); A("  s_lshl_b32 s7, s7, 8"); A("  s_add_u32 s7, s7, 0x32000000")
        A("  v_lshlrev_b32 v1, 2, v0")
        A(f"  buffer_store_dword v177, v1, {WS}, s7 offen")
        A("  s_waitcnt vmcnt(0)")
    A("  s_mul_i32 s10, s4, 144"); A("  s_mul_i32 s11, s12, 36"); A("  s_add_u32 s10, s10, s11"); A("  s_mul_i32 s10, s10, 1152")
    A("  s_add_u32 s72, s32, s10"); A("  s_addc_u32 s73, s33, 0"); A(f"  s_mov_b32 s74, {36*1152}"); A("  s_mov_b32 s75, 0x20000")
    H2 = 6
    A("  s_mov_b32 s10, 0")
    for u in range(H2):
        A(f"  buffer_load_dwordx4 {hring(u)}, v2, {W2}, s10 offen")
        A("  s_add_u32 s10, s10, 1152")
    A("  s_mov_b32 s11, 0")
    A("L_w2:")
    for u in range(H2):
        A(f"  v_readlane_b32 s7, v177, s11")
        A("  s_add_u32 s11, s11, 1")
        A(f"  s_waitcnt vmcnt({H2-1})")
        unpack(RING + 4 * u)
        A(f"  buffer_load_dwordx4 {hring(u)}, v2, {W2}, s10 offen")
        A("  s_add_u32 s10, s10, 1152")
        for k in range(8): A(f"  v_fmac_f32 v{OA+k}, s7, v{T+k}")
    A("  s_cmp_lt_u32 s11, 36")
    A("  s_cbranch_scc1 L_w2")
    A("  v_lshrrev_b32 v5, 3, v0"); A("  v_mul_u32_u24 v6, 1152, v5")
    A("  v_and_b32 v1, 7, v0"); A("  v_lshl_add_u32 v6, v1, 4, v6")
    A("  s_mov_b32 s10, 0")
    for e in range(5):
        A(f"  buffer_load_dwordx4 {wt(e)}, v6, {W2}, s10 offen offset:1024")
        A(f"  s_add_u32 s10, s10, {8*1152}")
    A("  v_lshlrev_b32 v5, 2, v5")
    for e in range(5):
        A(f"  ds_bpermute_b32 v{SCR+e}, v5, v177")
        A("  v_add_u32 v5, 32, v5")
    A("  s_waitcnt lgkmcnt(0)")
    for e in range(5):
        A(f"  s_waitcnt vmcnt({4-e})")
        unpack(WT + 4 * e)
        for k in range(8): A(f"  v_fmac_f32 v{OA+8+k}, v{SCR+e}, v{T+k}")
    wo_setup()
    for i in range(18): wo_load(i)

    A("L_tail:")
    A("  s_mov_b32 s10, 0x05040100"); A("  s_mov_b32 s11, 0x07060302")
    A("  s_waitcnt vmcnt(0)")
    for k in range(9):
        for i in range(4):
            a_, b_ = WT + 8 * k + i, WT + 8 * k + 4 + i
            A(f"  v_perm_b32 v{PL+4*k+i}, v{b_}, v{a_}, s10")
            A(f"  v_perm_b32 v{b_}, v{b_}, v{a_}, s11")
    if stamps: A("  s_memrealtime s[100:101]")
    A("  s_waitcnt lgkmcnt(0)")
    A("  s_barrier")
    A("  s_lshl_b32 s7, s3, 6")
    A("  v_lshlrev_b32 v1, 9, v3"); A("  v_lshl_add_u32 v1, v4, 2, v1"); A("  v_add_u32 v1, s7, v1")
    A(f"  ds_read_b32 v{T}, v1 offset:{OP}")
    A("  v_mov_b32 v5, 0")
    A(f"  ds_read_b128 v[{SCR}:{SCR+3}], v5 offset:{ML}")
    A(f"  ds_read_b128 v[{SCR+4}:{SCR+7}], v5 offset:{ML+16}")
    A("  v_lshlrev_b32 v6, 3, v3")
    A(f"  ds_read_b32 v{T+1}, v6 offset:{ML}")
    A(f"  ds_read_b32 v179, v5 offset:{GATE}")
    A("  s_waitcnt lgkmcnt(0)")
    m0, l0, m1, l1, m2, l2, m3, l3 = [f"v{SCR+i}" for i in range(8)]
    A(f"  v_max3_f32 v{T+2}, {m0}, {m1}, {m2}"); A(f"  v_max_f32 v{T+2}, v{T+2}, {m3}")
    for mm in (m0, m1, m2, m3, f"v{T+1}"):
        A(f"  v_sub_f32 {mm}, {mm}, v{T+2}")
    for mm in (m0, m1, m2, m3, f"v{T+1}"):
        A(f"  v_exp_f32 {mm}, {mm}")
    A(f"  v_mul_f32 v{T+3}, {m0}, {l0}")
    A(f"  v_fmac_f32 v{T+3}, {m1}, {l1}"); A(f"  v_fmac_f32 v{T+3}, {m2}, {l2}"); A(f"  v_fmac_f32 v{T+3}, {m3}, {l3}")
    A(f"  v_rcp_f32 v{T+3}, v{T+3}")
    A(f"  v_mul_f32 v{T}, v{T}, v{T+1}")
    A(f"  v_mul_f32 v{T+3}, v{T+3}, v179")
    A(f"  v_mov_b32 v{T+1}, v{T}"); A(f"  v_permlane16_swap_b32 v{T}, v{T+1}"); A(f"  v_add_f32 v{T}, v{T}, v{T+1}")
    A(f"  v_mov_b32 v{T+1}, v{T}"); A(f"  v_permlane32_swap_b32 v{T}, v{T+1}"); A(f"  v_add_f32 v{T}, v{T}, v{T+1}")
    A(f"  v_mul_f32 v{T}, v{T}, v{T+3}")
    if dbg:
        A("  s_lshl_b32 s7, s6, 3"); A("  s_add_u32 s7, s7, s3"); A("  s_lshl_b32 s7, s7, 8"); A("  s_add_u32 s7, s7, 0x33000000")
        A("  v_lshlrev_b32 v1, 2, v0")
        A(f"  buffer_store_dword v{T}, v1, {WS}, s7 offen")
        A("  s_waitcnt vmcnt(0)")
    A(f"  v_mov_b32_dpp v{T+1}, v{T} quad_perm:[1,0,3,2] row_mask:0xf bank_mask:0xf")
    A(f"  v_cvt_pk_bf16_f32 v{T}, v{T}, v{T+1}")
    A("  v_lshrrev_b32 v5, 3, v0"); A("  v_lshlrev_b32 v5, 3, v5")
    A(f"  ds_bpermute_b32 v{T+2}, v5, v{T}")
    ZS = 16
    for k in range(8): A(f"  v_readlane_b32 s{ZS+k}, v{T}, {2*k}")
    for k in range(8):
        for i in range(4):
            A(f"  v_dot2c_f32_bf16 v{OA+2*i}, s{ZS+k}, v{PL+4*k+i}")
            A(f"  v_dot2c_f32_bf16 v{OA+2*i+1}, s{ZS+k}, v{WT+8*k+4+i}")
    A("  s_waitcnt lgkmcnt(0)")
    for i in range(4):
        A(f"  v_dot2c_f32_bf16 v{OA+8+2*i}, v{T+2}, v{PL+32+i}")
        A(f"  v_dot2c_f32_bf16 v{OA+8+2*i+1}, v{T+2}, v{WT+64+4+i}")
    A("  s_mul_i32 s7, s3, 2304")
    A("  v_lshl_add_u32 v1, v0, 5, s7")
    A(f"  ds_write_b128 v1, v[{OA}:{OA+3}] offset:{OUTP}")
    A(f"  ds_write_b128 v1, v[{OA+4}:{OA+7}] offset:{OUTP+16}")
    E = OA + 8
    for j in range(4): A(f"  v_permlane32_swap_b32 v{E+j}, v{E+j+4}")
    for j in range(4): A(f"  v_add_f32 v{E+j}, v{E+j}, v{E+j+4}")
    for j in range(2): A(f"  v_permlane16_swap_b32 v{E+j}, v{E+j+2}")
    for j in range(2): A(f"  v_add_f32 v{E+j}, v{E+j}, v{E+j+2}")
    A(f"  v_add_f32_dpp v{E}, v{E}, v{E} row_ror:8 row_mask:0xf bank_mask:0x3")
    A(f"  v_add_f32_dpp v{E}, v{E+1}, v{E+1} row_ror:8 row_mask:0xf bank_mask:0xc")
    A("  v_and_b32 v1, 7, v0"); A("  v_lshlrev_b32 v1, 3, v1")
    A("  v_bfe_u32 v5, v0, 3, 1"); A("  v_add_u32 v1, v1, v5"); A("  v_lshl_add_u32 v1, v3, 1, v1")
    A("  v_lshl_add_u32 v1, v1, 2, s7")
    A(f"  ds_write_b32 v1, v{E} offset:{OUTP+2048}")
    A("  s_waitcnt lgkmcnt(0)")
    A("  s_barrier")
    A("  s_mul_i32 s7, s3, 288")
    A("  v_lshl_add_u32 v1, v0, 4, s7")
    A("  v_cmp_gt_u32 vcc, 18, v0")
    A("  s_and_saveexec_b64 s[10:11], vcc")
    for w in range(8):
        A(f"  ds_read_b128 v[{WT+4*w}:{WT+4*w+3}], v1 offset:{OUTP+2304*w}")
    for w in range(1, 8):
        A(f"  s_waitcnt lgkmcnt({7-w})")
        for k in range(4): A(f"  v_add_f32 v{WT+k}, v{WT+k}, v{WT+4*w+k}")
    A("  s_lshl_b32 s7, s5, 3"); A("  s_add_u32 s7, s7, s3")
    A("  s_lshl_b32 s12, s7, 14")
    A("  s_lshl_b32 s13, s4, 9"); A("  s_add_u32 s13, s13, s12")
    A(f"  buffer_store_dwordx4 v[{WT}:{WT+3}], v2, {WS}, s13 offen sc1")
    A("  s_waitcnt vmcnt(0)")
    A("  s_mov_b64 exec, 1")
    A("  s_lshl_b32 s7, s7, 2")
    A("  v_mov_b32 v5, s7"); A("  v_mov_b32 v6, 1")
    A(f"  global_atomic_add v7, v5, v6, s[40:41] {atom_flags}")
    A("  s_waitcnt vmcnt(0)")
    A("  v_readfirstlane_b32 s7, v7")
    A("  s_cmp_lg_u32 s7, 31")
    A("  s_cbranch_scc1 L_fin")
    A("  s_mov_b64 exec, 0x3ffff")
    for hh in range(32):
        if hh % 8 == 0 and hh: A("  s_add_u32 s12, s12, 4096")
        A(f"  buffer_load_dwordx4 v[{WT+4*hh}:{WT+4*hh+3}], v2, {WS}, s12 offen offset:{512*(hh%8)} sc1")
    A(f"  v_sub_f32 v178, 1.0, v179")
    A(f"  v_lshlrev_b32 v{T}, 16, v228"); A(f"  v_and_b32 v{T+1}, {sMASK}, v228")
    A(f"  v_lshlrev_b32 v{T+2}, 16, v229"); A(f"  v_and_b32 v{T+3}, {sMASK}, v229")
    for k in range(4): A(f"  v_mul_f32 v{T+k}, v178, v{T+k}")
    for hh in range(32):
        A(f"  s_waitcnt vmcnt({31-hh})")
        for k in range(4): A(f"  v_add_f32 v{T+k}, v{T+k}, v{WT+4*hh+k}")
    A(f"  v_cvt_pk_bf16_f32 v{T}, v{T}, v{T+1}"); A(f"  v_cvt_pk_bf16_f32 v{T+1}, v{T+2}, v{T+3}")
    A("  s_mul_i32 s7, s5, 1152"); A("  s_mul_i32 s12, s3, 144"); A("  s_add_u32 s7, s7, s12")
    A("  v_lshlrev_b32 v1, 3, v0")
    A(f"  buffer_store_dwordx2 v[{T}:{T+1}], v1, {OUT}, s7 offen")
    A("L_fin:")
    if stamps:
        A("  s_mov_b64 exec, 1")
        A("  s_memrealtime s[12:13]")
        A("  s_waitcnt lgkmcnt(0) vmcnt(0)")
        A("  s_cmp_lg_u32 s3, 0"); A("  s_cbranch_scc1 L_end")
        A("  s_lshl_b32 s7, s2, 6"); A("  s_add_u32 s7, s7, 0x20000000")
        A("  v_mov_b32 v4, s98"); A("  v_mov_b32 v5, s99"); A("  v_mov_b32 v6, s12"); A("  v_mov_b32 v7, s13")
        A("  v_mov_b32 v1, 0")
        A(f"  buffer_store_dwordx4 v[4:7], v1, {WS}, s7 offen")
        A("  s_getreg_b32 s13, hwreg(HW_REG_XCC_ID)")
        A("  v_mov_b32 v8, s13"); A("  v_mov_b32 v9, 0"); A("  v_mov_b32 v10, s100"); A("  v_mov_b32 v11, s101")
        A(f"  buffer_store_dwordx4 v[8:11], v1, {WS}, s7 offen offset:16")
    A("L_end:")
    A("  s_endpgm")
    A('.section .rodata,"a"'); A(".p2align 6"); A(f".amdhsa_kernel {KN}")
    A("  .amdhsa_next_free_vgpr 256"); A("  .amdhsa_next_free_sgpr 102"); A("  .amdhsa_accum_offset 256")
    A("  .amdhsa_group_segment_fixed_size 0"); A("  .amdhsa_kernarg_size 112"); A("  .amdhsa_user_sgpr_count 2")
    A("  .amdhsa_user_sgpr_kernarg_segment_ptr 1"); A("  .amdhsa_system_sgpr_workgroup_id_x 1"); A(".end_amdhsa_kernel")
    txt = A.fix()
    return txt

if __name__ == "__main__":
    import argparse
    ap = argparse.ArgumentParser()
    ap.add_argument("-o", default="k.s")
    ap.add_argument("--R", type=int, default=5)
    ap.add_argument("--stamps", action="store_true")
    ap.add_argument("--dbg", action="store_true")
    a = ap.parse_args()
    open(a.o, "w").write(gen(R=a.R, stamps=a.stamps, dbg=a.dbg))
    print("wrote", a.o)
```

```python
import sys, math, struct
from asmlib import Asm

KN = "gated_mix__mha_block_cached__mixer_channel_mlp__decode_kernel"
HEADER = open("gated_mix__mha_block_cached__mixer_channel_mlp__decode.s.ref").read().split("; Override launch")[0]
f2u = lambda x: "0x%08x" % struct.unpack("<I", struct.pack("<f", x))[0]

QP   = 0
OP   = 2048
SC   = 4096
ML   = SC + 16384
GATE = ML + 32
HCNT = GATE + 4
LAST = GATE + 8
YL   = ML + 64
HP   = YL + 2560
OUTP = HP + 6912
LDS_TOTAL = OUTP + 9216

def gen(R=5, kvflags="nt", wflags="nt", stamps=False, dbg=False, atom_flags="sc0 sc1", NPRE=32, HRW=8, H2=6):
    A = Asm()
    S = 8
    STR = [56, 58, 60, 62, 64, 66]
    STH = [44, 46, 14, 56, 58, 8]
    def stamp(regs, i):
        if stamps:
            A(f"  s_memrealtime s[{regs[i]}:{regs[i]+1}]"); A("  s_waitcnt lgkmcnt(0)")
    A(HEADER.rstrip())
    A(f"; @launch grid=(256,1,1) block=(512,1,1) lds={LDS_TOTAL}")
    A('.amdgcn_target "amdgcn-amd-amdhsa--gfx950"')
    A(".text"); A(f".globl {KN}"); A(".p2align 8"); A(f".type {KN},@function"); A(f"{KN}:")
    KV = "s[44:47]"; WQ = "s[48:51]"; XA = "s[52:55]"; GW = "s[60:63]"; W1 = "s[64:67]"
    B1 = "s[68:71]"; W2 = "s[72:75]"; WO = "s[76:79]"; B2 = "s[80:83]"; WS = "s[84:87]"; OUT = "s[88:91]"
    sMASK = "s92"; sM2 = "s[94:95]"; sM1 = "s[96:97]"
    ACC = 8
    T = 16
    RING = 24
    PRE = 56
    SCR = 184
    Q = 200
    vP, vPn, vSC, vRG = "v204", "v205", "v206", "v207"
    AV = 208
    WT = 24
    HRING = 168
    HS = 200
    OA = 216
    HX = 232
    vG_, v1mG, vZ = "v246", "v247", "v248"
    PL = 168
    ring = lambda s: f"v[{RING+4*(s%S)}:{RING+4*(s%S)+3}]"
    pre = lambda t: f"v[{PRE+4*t}:{PRE+4*t+3}]"
    wt = lambda i: f"v[{WT+4*i}:{WT+4*i+3}]"
    def ktile(t):
        return pre(t) if t < NPRE else ring(t)

    A("  s_cmp_ge_u32 s2, 256")
    A("  s_cbranch_scc1 L_end")
    A("  s_load_dwordx16 s[16:31], s[0:1], 0")
    A("  s_load_dwordx8 s[32:39], s[0:1], 64")
    A("  s_load_dwordx4 s[40:43], s[0:1], 96")
    if stamps: A("  s_memrealtime s[98:99]")
    A("  v_lshrrev_b32 v1, 6, v0")
    A("  v_and_b32 v0, 63, v0")
    A("  v_lshlrev_b32 v2, 4, v0")
    A("  v_readfirstlane_b32 s3, v1")
    A("  s_and_b32 s4, s2, 7")
    A("  s_lshl_b32 s4, s4, 2")
    A("  s_bfe_u32 s7, s2, 0x20003")
    A("  s_or_b32 s4, s4, s7")
    A("  s_lshr_b32 s5, s2, 5")
    A("  s_lshl_b32 s6, s5, 5")
    A("  s_or_b32 s6, s6, s4")
    A("  s_lshl_b32 s9, s6, 20")
    A("  s_lshl_b32 s13, s3, 10")
    A("  s_mov_b32 s46, 0x100000"); A("  s_mov_b32 s47, 0x20000")
    A("  v_lshrrev_b32 v3, 4, v0")
    A("  v_and_b32 v4, 15, v0")
    A("  s_mov_b32 s92, 0xffff0000")
    A("  s_mov_b32 s8, s13")
    A("  s_cmp_ge_u32 s3, 4")
    A("  s_cbranch_scc1 L_helper")
    A("  s_waitcnt lgkmcnt(0)")
    A("  s_add_u32 s44, s18, s9"); A("  s_addc_u32 s45, s19, 0")
    for t in range(R):
        A(f"  buffer_load_dwordx4 {ktile(t)}, v2, {KV}, s8 offen {kvflags}")
        A("  s_addk_i32 s8, 4096")
    A("  s_add_u32 s14, s20, s9"); A("  s_addc_u32 s15, s21, 0")
    A("  v_and_b32 v1, 2, v0"); A(f"  v_cmp_ne_u32 {sM2}, 0, v1")
    A("  v_and_b32 v1, 1, v0"); A(f"  v_cmp_ne_u32 {sM1}, 0, v1")
    A("  v_lshlrev_b32 v5, 5, v4"); A("  v_lshl_add_u32 v5, v3, 3, v5")
    A("  s_lshl_b32 s7, s3, 9"); A(f"  v_add_u32 {vRG}, s7, v5")
    A("  s_lshl_b32 s7, s3, 12"); A(f"  v_lshl_add_u32 {vSC}, v0, 2, s7")
    for k in range(8): A(f"  v_mov_b32 v{AV+k}, 0")
    for t in range(NPRE):
        A(f"  s_waitcnt vmcnt({R-1})")
        A(f"  buffer_load_dwordx4 {ktile(t+R)}, v2, {KV}, s8 offen {kvflags}")
        A("  s_addk_i32 s8, 4096")
    stamp(STR, 4)
    A("  s_barrier")
    A("  v_lshlrev_b32 v5, 5, v4")
    QT = SCR
    for w in range(2):
        A(f"  ds_read_b128 v[{SCR+8*w}:{SCR+8*w+3}], v5 offset:{QP+512*w}")
        A(f"  ds_read_b128 v[{SCR+8*w+4}:{SCR+8*w+7}], v5 offset:{QP+512*w+16}")
    A(f"  ds_read_b128 v[{ACC}:{ACC+3}], v5 offset:{QP+1024}")
    A(f"  ds_read_b128 v[{ACC+4}:{ACC+7}], v5 offset:{QP+1024+16}")
    A(f"  ds_read_b128 v[{T}:{T+3}], v5 offset:{QP+1536}")
    A(f"  ds_read_b128 v[{T+4}:{T+7}], v5 offset:{QP+1536+16}")
    A("  s_waitcnt lgkmcnt(0)")
    for k in range(8):
        A(f"  v_add_f32 v{SCR+k}, v{SCR+k}, v{SCR+8+k}")
        A(f"  v_add_f32 v{ACC+k}, v{ACC+k}, v{T+k}")
    for k in range(8): A(f"  v_add_f32 v{SCR+k}, v{SCR+k}, v{ACC+k}")
    for k in range(4): A(f"  v_cvt_pk_bf16_f32 v{Q+k}, v{SCR+2*k}, v{SCR+2*k+1}")
    if dbg:
        A("  s_cmp_lg_u32 s3, 0"); A("  s_cbranch_scc1 L_dq")
        A("  s_mov_b32 s84, s42"); A("  s_mov_b32 s85, s43"); A("  s_mov_b32 s86, 0x40000000"); A("  s_mov_b32 s87, 0x20000")
        A("  s_lshl_b32 s7, s6, 8"); A("  s_add_u32 s7, s7, 0x30000000")
        A("  v_lshlrev_b32 v1, 4, v4")
        A(f"  buffer_store_dwordx4 v[{Q}:{Q+3}], v1, {WS}, s7 offen")
        A("  s_waitcnt vmcnt(0)")
        A("L_dq:")
    stamp(STR, 0)
    a = lambda i: f"v{SCR+i}"
    def kdots(u, r):
        for k in range(4):
            c = "0" if k == 0 else a(u)
            A(f"  v_dot2_f32_bf16 {a(u)}, v{r+k}, v{Q+k}, {c}")
    def kreduce():
        for i in range(8):
            A(f"  v_add_f32_dpp {a(i)}, {a(i)}, {a(i)} row_ror:8 row_mask:0xf bank_mask:0x3")
            A(f"  v_add_f32_dpp {a(i)}, {a(i+8)}, {a(i+8)} row_ror:8 row_mask:0xf bank_mask:0xc")
        for i in range(4):
            A(f"  v_add_f32_dpp {a(i)}, {a(i)}, {a(i)} row_shl:4 row_mask:0xf bank_mask:0x5")
            A(f"  v_add_f32_dpp {a(i)}, {a(i+4)}, {a(i+4)} row_shr:4 row_mask:0xf bank_mask:0xa")
        for i in range(2):
            A(f"  v_cndmask_b32 v{T+i}, {a(i)}, {a(i+2)}, {sM2}")
            A(f"  v_cndmask_b32 v{T+2+i}, {a(i+2)}, {a(i)}, {sM2}")
        for i in range(2):
            A(f"  v_add_f32_dpp v{T+i}, v{T+2+i}, v{T+i} quad_perm:[2,3,0,1] row_mask:0xf bank_mask:0xf")
        A(f"  v_cndmask_b32 v{T+4}, v{T}, v{T+1}, {sM1}")
        A(f"  v_cndmask_b32 v{T+5}, v{T+1}, v{T}, {sM1}")
        A(f"  v_add_f32_dpp v{T+4}, v{T+5}, v{T+4} quad_perm:[1,0,3,2] row_mask:0xf bank_mask:0xf")
        A(f"  ds_write_b32 {vSC}, v{T+4} offset:{SC}")
        A(f"  v_add_u32 {vSC}, 256, {vSC}")
    for blk in range(NPRE // 16):
        for u in range(16): kdots(u, PRE + 4 * (16 * blk + u))
        kreduce()
    A(f"  s_mov_b32 s12, {NPRE//16}")
    A("L_kloop:")
    for u in range(16):
        A(f"  s_waitcnt vmcnt({R-1})")
        if u + R == 16:
            A("  s_cmp_eq_u32 s12, 15")
            A("  s_cselect_b32 s44, s14, s44"); A("  s_cselect_b32 s45, s15, s45"); A("  s_cselect_b32 s8, s13, s8")
        A(f"  buffer_load_dwordx4 {ring(u+R)}, v2, {KV}, s8 offen {kvflags}")
        A("  s_addk_i32 s8, 4096")
        kdots(u, RING + 4 * (u % S))
    kreduce()
    A("  s_add_u32 s12, s12, 1")
    A("  s_cmp_lt_u32 s12, 16")
    A("  s_cbranch_scc1 L_kloop")
    stamp(STR, 1)
    A(f"  v_subrev_u32 {vSC}, 4096, {vSC}")
    A("  s_waitcnt lgkmcnt(0)")
    for i in range(16): A(f"  ds_read_b32 {a(i)}, {vSC} offset:{SC+256*i}")
    A("  s_waitcnt lgkmcnt(0)")
    if dbg:
        A("  s_mov_b32 s84, s42"); A("  s_mov_b32 s85, s43"); A("  s_mov_b32 s86, 0x40000000"); A("  s_mov_b32 s87, 0x20000")
        A("  s_lshl_b32 s7, s6, 2"); A("  s_add_u32 s7, s7, s3"); A("  s_lshl_b32 s7, s7, 12"); A("  s_add_u32 s7, s7, 0x31000000")
        A("  v_lshlrev_b32 v1, 2, v0")
        for i in range(16): A(f"  buffer_store_dword {a(i)}, v1, {WS}, s7 offen offset:{256*i}")
        A("  s_waitcnt vmcnt(0)")
    t0, t1 = f"v{T}", f"v{T+1}"
    A(f"  v_max3_f32 {t0}, {a(0)}, {a(1)}, {a(2)}")
    for i in range(3, 15, 2): A(f"  v_max3_f32 {t0}, {t0}, {a(i)}, {a(i+1)}")
    A(f"  v_max_f32 {t0}, {t0}, {a(15)}")
    def allreduce(op, v, tmp):
        for sh in (8, 4, 2, 1):
            A(f"  {op}_dpp {v}, {v}, {v} row_ror:{sh} row_mask:0xf bank_mask:0xf")
        A(f"  v_mov_b32 {tmp}, {v}"); A(f"  v_permlane16_swap_b32 {v}, {tmp}"); A(f"  {op} {v}, {v}, {tmp}")
        A(f"  v_mov_b32 {tmp}, {v}"); A(f"  v_permlane32_swap_b32 {v}, {tmp}"); A(f"  {op} {v}, {v}, {tmp}")
    allreduce("v_max_f32", t0, t1)
    SC2 = (128 ** -0.5) * math.log2(math.e)
    A(f"  s_mov_b32 s7, {f2u(SC2)}")
    A(f"  v_mul_f32 {t0}, s7, {t0}")
    for i in range(16): A(f"  v_fma_f32 {a(i)}, {a(i)}, s7, -{t0}")
    for i in range(16): A(f"  v_exp_f32 {a(i)}, {a(i)}")
    for i in range(16): A(f"  ds_write_b32 {vSC}, {a(i)} offset:{SC+256*i}")
    A(f"  v_mov_b32 {vP}, {a(0)}")
    A(f"  v_add_f32 v{T+2}, {a(0)}, {a(1)}")
    for i in range(2, 16): A(f"  v_add_f32 v{T+2}, v{T+2}, {a(i)}")
    allreduce("v_add_f32", f"v{T+2}", f"v{T+3}")
    A(f"  v_mov_b32 v{T+1}, v{T+2}")
    A("  s_lshl_b32 s7, s3, 3")
    A(f"  v_mov_b32 v1, s7")
    A(f"  ds_write_b64 v1, v[{T}:{T+1}] offset:{ML}")
    A("  s_mov_b32 s12, 0")
    stamp(STR, 2)
    def unpack(r):
        for k in range(4):
            A(f"  v_lshlrev_b32 v{T+2*k}, 16, v{r+k}")
            A(f"  v_and_b32 v{T+2*k+1}, {sMASK}, v{r+k}")
    A("L_vloop:")
    A(f"  v_add_u32 {vSC}, 256, {vSC}")
    A(f"  ds_read_b32 {vPn}, {vSC} offset:{SC}")
    for u in range(16):
        A(f"  s_waitcnt vmcnt({R-1})")
        A(f"  buffer_load_dwordx4 {ring(u+R)}, v2, {KV}, s8 offen {kvflags}")
        A("  s_addk_i32 s8, 4096")
        unpack(RING + 4 * (u % S))
        for k in range(8):
            A(f"  v_fmac_f32_dpp v{AV+k}, {vP}, v{T+k} row_newbcast:{u} row_mask:0xf bank_mask:0xf")
    A("  s_waitcnt lgkmcnt(0)")
    A(f"  v_mov_b32 {vP}, {vPn}")
    A("  s_add_u32 s12, s12, 1")
    A("  s_cmp_lt_u32 s12, 16")
    A("  s_cbranch_scc1 L_vloop")
    stamp(STR, 3)
    def reduce_g(a_):
        for j in range(4): A(f"  v_permlane32_swap_b32 v{a_+j}, v{a_+j+4}")
        for j in range(4): A(f"  v_add_f32 v{a_+j}, v{a_+j}, v{a_+j+4}")
        for j in range(2): A(f"  v_permlane16_swap_b32 v{a_+j}, v{a_+j+2}")
        for j in range(2): A(f"  v_add_f32 v{a_+j}, v{a_+j}, v{a_+j+2}")
    reduce_g(AV)
    A(f"  ds_write_b64 {vRG}, v[{AV}:{AV+1}] offset:{OP}")
    A("  s_waitcnt lgkmcnt(0)")
    A("  s_barrier")
    A("  s_barrier")
    A("  s_branch L_final")

    A("L_helper:")
    A("  s_sub_u32 s12, s3, 4")
    A("  s_mul_i32 s7, s5, 1152")
    A("  v_lshlrev_b32 v5, 3, v4"); A("  v_lshl_add_u32 v5, v3, 1, v5")
    A("  v_lshlrev_b32 v1, 4, v4"); A("  v_lshl_add_u32 v1, v3, 13, v1")
    A(f"  s_mul_i32 s10, s12, {144*8192}"); A("  s_lshl_b32 s11, s4, 8"); A("  s_add_u32 s10, s10, s11")
    A("  s_mul_i32 s11, s12, 288")
    A(f"  s_mov_b32 s50, {576*8192}"); A("  s_mov_b32 s51, 0x20000")
    A("  s_mov_b32 s54, 1152"); A("  s_mov_b32 s55, 0x20000")
    A("  s_waitcnt lgkmcnt(0)")
    A("  s_add_u32 s52, s16, s7"); A("  s_addc_u32 s53, s17, 0")
    A("  s_mov_b32 s48, s22"); A("  s_mov_b32 s49, s23")
    for k in range(3):
        A(f"  buffer_load_ushort v{5+0 if False else 0+ (6 if k==0 else 7 if k==1 else 8)}, v5, {XA}, s11 offen offset:{128*k}")
    for i in range(36):
        A(f"  buffer_load_dwordx4 {wt(i)}, v1, {WQ}, s10 offen {wflags}")
        if i < 35: A("  s_add_u32 s10, s10, 32768")
    A("  s_mov_b32 s60, s36"); A("  s_mov_b32 s61, s37"); A("  s_mov_b32 s62, 1152"); A("  s_mov_b32 s63, 0x20000")
    A("  s_mov_b32 s68, s30"); A("  s_mov_b32 s69, s31"); A("  s_mov_b32 s70, 9216"); A("  s_mov_b32 s71, 0x20000")
    A("  s_mov_b32 s80, s34"); A("  s_mov_b32 s81, s35"); A("  s_mov_b32 s82, 1152"); A("  s_mov_b32 s83, 0x20000")
    A("  v_lshlrev_b32 v1, 2, v0")
    for k in range(5): A(f"  buffer_load_dword v{HX+k}, v1, {XA}, 0 offen offset:{256*k}")
    for k in range(5): A(f"  buffer_load_dword v{HX+5+k}, v1, {GW}, 0 offen offset:{256*k}")
    A("  s_mul_i32 s10, s4, 288"); A("  s_mul_i32 s11, s12, 72"); A("  s_add_u32 s10, s10, s11")
    A("  v_lshlrev_b32 v1, 1, v0")
    A(f"  buffer_load_ushort v{HX+10}, v1, {B1}, s10 offen")
    NYOUNG = 11
    A("  s_mov_b32 s76, s24"); A("  s_mov_b32 s77, s25"); A(f"  s_mov_b32 s78, {4096*1152}"); A("  s_mov_b32 s79, 0x20000")
    for k in range(16): A(f"  v_mov_b32 v{OA+k}, 0")
    A(f"  s_waitcnt vmcnt({36+NYOUNG})")
    for k in range(3): A(f"  v_lshlrev_b32 v{6+k}, 16, v{6+k}")
    QA = HS
    for i in range(36):
        A(f"  s_waitcnt vmcnt({35-i+NYOUNG})")
        unpack(WT + 4 * i)
        src = f"v{6 + i // 16}"
        for k in range(8):
            op = "v_mul_f32_dpp" if i == 0 else "v_fmac_f32_dpp"
            A(f"  {op} v{QA+k}, {src}, v{T+k} row_newbcast:{i%16} row_mask:0xf bank_mask:0xf")
    reduce_g(QA)
    A("  v_lshlrev_b32 v5, 5, v4"); A("  v_lshl_add_u32 v5, v3, 3, v5")
    A("  s_lshl_b32 s7, s12, 9"); A("  v_add_u32 v5, s7, v5")
    A(f"  ds_write_b64 v5, v[{QA}:{QA+1}] offset:{QP}")
    A("  v_mov_b32 v1, 0"); A(f"  v_mov_b32 v5, {HCNT}")
    A("  ds_write_b32 v5, v1")
    A("  s_waitcnt lgkmcnt(0)")
    A("  s_barrier")
    stamp(STH, 2)
    X = HS
    A("  s_waitcnt vmcnt(0)")
    for k in range(5):
        A(f"  v_lshlrev_b32 v{X+2*k}, 16, v{HX+k}")
        A(f"  v_and_b32 v{X+2*k+1}, {sMASK}, v{HX+k}")
    A(f"  v_add_f32 {t0}, v{X}, v{X+1}")
    for k in range(2, 10): A(f"  v_add_f32 {t0}, {t0}, v{X+k}")
    allreduce("v_add_f32", t0, t1)
    A(f"  v_mul_f32 {t0}, {f2u(1.0/576)}, {t0}")
    for k in range(10): A(f"  v_sub_f32 v{X+k}, v{X+k}, {t0}")
    A("  v_cmp_gt_u32 vcc, 32, v0")
    A(f"  v_cndmask_b32 v{X+8}, 0, v{X+8}, vcc"); A(f"  v_cndmask_b32 v{X+9}, 0, v{X+9}, vcc")
    A(f"  v_mul_f32 {t0}, v{X}, v{X}")
    for k in range(1, 10): A(f"  v_fmac_f32 {t0}, v{X+k}, v{X+k}")
    allreduce("v_add_f32", t0, t1)
    A(f"  v_mov_b32 {t1}, {f2u(1e-5)}")
    A(f"  v_fmac_f32 {t1}, {f2u(1.0/576)}, {t0}")
    A(f"  v_rsq_f32 {t1}, {t1}")
    for k in range(10): A(f"  v_mul_f32 v{X+k}, v{X+k}, {t1}")
    A("  v_lshlrev_b32 v1, 3, v0")
    for k in range(5): A(f"  ds_write_b64 v1, v[{X+2*k}:{X+2*k+1}] offset:{YL+512*k}")
    A(f"  v_dot2_f32_bf16 {t0}, v{HX}, v{HX+5}, 0")
    for k in range(1, 5): A(f"  v_dot2_f32_bf16 {t0}, v{HX+k}, v{HX+5+k}, {t0}")
    allreduce("v_add_f32", t0, t1)
    A(f"  v_mul_f32 {t0}, {f2u(-math.log2(math.e))}, {t0}")
    A(f"  v_exp_f32 {t0}, {t0}")
    A(f"  v_add_f32 {t0}, 1.0, {t0}")
    A(f"  v_rcp_f32 {vG_}, {t0}")
    A(f"  v_sub_f32 {v1mG}, 1.0, {vG_}")
    A(f"  v_mov_b32 v1, {GATE}")
    A(f"  ds_write_b32 v1, {vG_}")
    A("  v_mul_u32_u24 v5, 57, v0"); A("  v_lshrrev_b32 v5, 10, v5")
    A("  v_mul_u32_u24 v6, 18, v5"); A("  v_sub_u32 v6, v0, v6")
    A("  v_mul_u32_u24 v7, 9216, v5"); A("  v_lshl_add_u32 v7, v6, 4, v7")
    A("  s_mov_b32 s64, s28"); A("  s_mov_b32 s65, s29"); A(f"  s_mov_b32 s66, {576*9216}"); A("  s_mov_b32 s67, 0x20000")
    A(f"  s_mul_i32 s10, s12, {144*9216}"); A("  s_mul_i32 s11, s4, 288"); A("  s_add_u32 s10, s10, s11")
    A("  s_mul_i32 s11, s12, 576")
    A("  v_lshl_add_u32 v1, v5, 2, s11")
    hring = lambda s: f"v[{HRING+4*s}:{HRING+4*s+3}]"
    for u in range(HRW):
        A(f"  buffer_load_dwordx4 {hring(u)}, v7, {W1}, s10 offen {wflags}")
        A("  s_add_u32 s10, s10, 27648")
    for k in range(8): A(f"  v_mov_b32 v{ACC+k}, 0")
    A("  s_mov_b32 s11, 0")
    A("  s_waitcnt lgkmcnt(0)")
    A("L_w1:")
    for u in range(HRW): A(f"  ds_read_b32 v{HS+u}, v1 offset:{YL+12*u}")
    A(f"  v_add_u32 v1, {12*HRW}, v1")
    A(f"  s_cmp_eq_u32 s11, {48//HRW-1}")
    A("  s_cselect_b32 s10, 0x40000000, s10")
    A("  s_waitcnt lgkmcnt(0)")
    for u in range(HRW):
        A(f"  s_waitcnt vmcnt({HRW-1})")
        unpack(HRING + 4 * u)
        A(f"  buffer_load_dwordx4 {hring(u)}, v7, {W1}, s10 offen {wflags}")
        A("  s_add_u32 s10, s10, 27648")
        for k in range(8): A(f"  v_fmac_f32 v{ACC+k}, v{HS+u}, v{T+k}")
    A("  s_add_u32 s11, s11, 1")
    A(f"  s_cmp_lt_u32 s11, {48//HRW}")
    A("  s_cbranch_scc1 L_w1")
    stamp(STH, 0)
    A("  s_mul_i32 s11, s12, 3")
    A("  v_add_u32 v1, s11, v5"); A("  v_mul_u32_u24 v1, 576, v1"); A("  v_lshl_add_u32 v1, v6, 5, v1")
    A("  v_cmp_gt_u32 vcc, 54, v0")
    A("  s_and_saveexec_b64 s[10:11], vcc")
    A(f"  ds_write_b128 v1, v[{ACC}:{ACC+3}] offset:{HP}")
    A(f"  ds_write_b128 v1, v[{ACC+4}:{ACC+7}] offset:{HP+16}")
    A("  s_mov_b64 exec, 1")
    A(f"  v_mov_b32 v1, {HCNT}"); A("  v_mov_b32 v5, 1")
    A("  ds_add_u32 v1, v5")
    A("  s_mov_b64 exec, -1")
    A(f"  v_mov_b32 v1, {HCNT}")
    A("L_hspin:")
    A("  ds_read_b32 v5, v1")
    A("  s_waitcnt lgkmcnt(0)")
    A("  v_readfirstlane_b32 s10, v5")
    A("  s_cmp_ge_u32 s10, 4")
    A("  s_cbranch_scc1 L_hgo")
    A("  s_sleep 4")
    A("  s_branch L_hspin")
    A("L_hgo:")
    A("  s_mul_i32 s11, s12, 144")
    A("  v_min_u32 v1, 35, v0")
    A("  v_lshl_add_u32 v1, v1, 2, s11")
    for k in range(12): A(f"  ds_read_b32 v{HS+k}, v1 offset:{HP+576*k}")
    A(f"  v_lshlrev_b32 {t0}, 16, v{HX+10}")
    A("  s_waitcnt lgkmcnt(0)")
    for k in range(12): A(f"  v_add_f32 {t0}, {t0}, v{HS+k}")
    k0 = math.sqrt(2 / math.pi)
    A(f"  v_mul_f32 {t1}, {t0}, {t0}")
    A(f"  v_mov_b32 v{T+2}, {f2u(-2*k0*math.log2(math.e))}")
    A(f"  v_fmac_f32 v{T+2}, {f2u(-2*k0*0.044715*math.log2(math.e))}, {t1}")
    A(f"  v_mul_f32 v{T+2}, v{T+2}, {t0}")
    A(f"  v_exp_f32 v{T+2}, v{T+2}")
    A(f"  v_add_f32 v{T+2}, 1.0, v{T+2}")
    A(f"  v_rcp_f32 v{T+2}, v{T+2}")
    A(f"  v_mul_f32 {t0}, {t0}, v{T+2}")
    A(f"  v_mul_f32 {t0}, {v1mG}, {t0}")
    A("  v_cmp_gt_u32 vcc, 36, v0")
    A(f"  v_cndmask_b32 {vZ}, 0, {t0}, vcc")
    A("  s_mov_b32 s84, s42"); A("  s_mov_b32 s85, s43"); A("  s_mov_b32 s86, 0x40000000"); A("  s_mov_b32 s87, 0x20000")
    if dbg:
        A("  s_lshl_b32 s7, s6, 2"); A("  s_add_u32 s7, s7, s12"); A("  s_lshl_b32 s7, s7, 8"); A("  s_add_u32 s7, s7, 0x32000000")
        A("  v_lshlrev_b32 v1, 2, v0")
        A(f"  buffer_store_dword {vZ}, v1, {WS}, s7 offen")
        A("  s_waitcnt vmcnt(0)")
    A("  s_mul_i32 s10, s4, 144"); A("  s_mul_i32 s11, s12, 36"); A("  s_add_u32 s10, s10, s11"); A("  s_mul_i32 s10, s10, 1152")
    A("  s_add_u32 s72, s32, s10"); A("  s_addc_u32 s73, s33, 0"); A(f"  s_mov_b32 s74, {36*1152}"); A("  s_mov_b32 s75, 0x20000")
    A("  s_mov_b32 s10, 0")
    for u in range(H2):
        A(f"  buffer_load_dwordx4 {hring(u)}, v2, {W2}, s10 offen {wflags}")
        A("  s_addk_i32 s10, 1152")
    A("  s_mov_b32 s11, 0")
    A("L_w2:")
    for u in range(H2):
        A(f"  v_readlane_b32 s7, {vZ}, s11")
        A("  s_add_u32 s11, s11, 1")
        A(f"  s_waitcnt vmcnt({H2-1})")
        unpack(HRING + 4 * u)
        A(f"  buffer_load_dwordx4 {hring(u)}, v2, {W2}, s10 offen {wflags}")
        A("  s_addk_i32 s10, 1152")
        for k in range(8): A(f"  v_fmac_f32 v{OA+k}, s7, v{T+k}")
    A("  s_cmp_lt_u32 s11, 36")
    A("  s_cbranch_scc1 L_w2")
    stamp(STH, 1)
    A("  v_lshrrev_b32 v5, 3, v0"); A("  v_mul_u32_u24 v6, 1152, v5")
    A("  v_and_b32 v1, 7, v0"); A("  v_lshl_add_u32 v6, v1, 4, v6")
    A("  s_mov_b32 s10, 0")
    for e in range(5):
        A(f"  buffer_load_dwordx4 {wt(e)}, v6, {W2}, s10 offen offset:1024 {wflags}")
        A(f"  s_addk_i32 s10, {8*1152}")
    A("  v_lshlrev_b32 v5, 2, v5")
    for e in range(5):
        A(f"  ds_bpermute_b32 v{HS+e}, v5, {vZ}")
        A("  v_add_u32 v5, 32, v5")
    A("  s_waitcnt lgkmcnt(0)")
    for e in range(5):
        A(f"  s_waitcnt vmcnt({4-e})")
        unpack(WT + 4 * e)
        for k in range(8): A(f"  v_fmac_f32 v{OA+8+k}, v{HS+e}, v{T+k}")
    A("  s_lshl_b32 s10, s4, 7"); A("  s_lshl_b32 s11, s12, 5"); A("  s_add_u32 s10, s10, s11"); A("  s_mul_i32 s10, s10, 1152")
    A("  v_lshrrev_b32 v5, 3, v0"); A("  v_mul_u32_u24 v5, 2304, v5")
    A("  v_and_b32 v1, 7, v0"); A("  v_lshl_add_u32 v5, v1, 4, v5")
    for e in range(2):
        for par in range(2):
            A(f"  buffer_load_dwordx4 {wt(32+2*e+par)}, v5, {WO}, s10 offen offset:{1024+1152*par} {wflags}")
        if e == 0: A(f"  s_add_u32 s11, s10, {16*1152}"); A("  s_mov_b32 s7, s10"); A("  s_mov_b32 s10, s11")
    A("  s_mov_b32 s10, s7")
    for r in range(32):
        A(f"  buffer_load_dwordx4 {wt(r)}, v2, {WO}, s10 offen {wflags}")
        A("  s_addk_i32 s10, 1152")
    A("  s_mov_b32 s10, 0x05040100"); A("  s_mov_b32 s11, 0x07060302")
    A("  s_waitcnt vmcnt(0)")
    for k in range(18):
        for i in range(4):
            a_, b_ = WT + 8 * k + i, WT + 8 * k + 4 + i
            tmp = T + (i % 4)
            A(f"  v_perm_b32 v{tmp}, v{b_}, v{a_}, s10")
            A(f"  v_perm_b32 v{b_}, v{b_}, v{a_}, s11")
            A(f"  v_mov_b32 v{a_}, v{tmp}")
    A("  s_lshl_b32 s7, s12, 7")
    A("  v_lshlrev_b32 v1, 9, v3"); A("  v_lshl_add_u32 v1, v4, 2, v1"); A("  v_add_u32 v1, s7, v1")
    A("  v_mov_b32 v5, 0")
    A("  v_lshlrev_b32 v6, 3, v3")
    A("  v_lshrrev_b32 v7, 3, v0"); A("  v_lshlrev_b32 v7, 3, v7")
    A("  s_barrier")
    if stamps:
        A("  s_memrealtime s[100:101]"); A("  s_waitcnt lgkmcnt(0)")
    A(f"  ds_read_b32 v{T}, v1 offset:{OP}")
    A(f"  ds_read_b32 v{T+4}, v1 offset:{OP+64}")
    A(f"  ds_read_b128 v[{HS}:{HS+3}], v5 offset:{ML}")
    A(f"  ds_read_b128 v[{HS+4}:{HS+7}], v5 offset:{ML+16}")
    A(f"  ds_read_b32 v{T+1}, v6 offset:{ML}")
    A("  s_waitcnt lgkmcnt(0)")
    m0, l0, m1, l1, m2, l2, m3, l3 = [f"v{HS+i}" for i in range(8)]
    A(f"  v_max3_f32 v{T+2}, {m0}, {m1}, {m2}"); A(f"  v_max_f32 v{T+2}, v{T+2}, {m3}")
    for mm in (m0, m1, m2, m3, f"v{T+1}"): A(f"  v_sub_f32 {mm}, {mm}, v{T+2}")
    for mm in (m0, m1, m2, m3, f"v{T+1}"): A(f"  v_exp_f32 {mm}, {mm}")
    A(f"  v_mul_f32 v{T+3}, {m0}, {l0}")
    A(f"  v_fmac_f32 v{T+3}, {m1}, {l1}"); A(f"  v_fmac_f32 v{T+3}, {m2}, {l2}"); A(f"  v_fmac_f32 v{T+3}, {m3}, {l3}")
    A(f"  v_rcp_f32 v{T+3}, v{T+3}")
    A(f"  v_mul_f32 v{T}, v{T}, v{T+1}"); A(f"  v_mul_f32 v{T+4}, v{T+4}, v{T+1}")
    A(f"  v_mul_f32 v{T+3}, v{T+3}, {vG_}")
    A(f"  v_permlane32_swap_b32 v{T}, v{T+4}")
    A(f"  v_add_f32 v{T}, v{T}, v{T+4}")
    A(f"  v_mov_b32 v{T+1}, v{T}"); A(f"  v_permlane16_swap_b32 v{T}, v{T+1}"); A(f"  v_add_f32 v{T}, v{T}, v{T+1}")
    A(f"  v_mul_f32 v{T}, v{T}, v{T+3}")
    if dbg:
        A("  s_lshl_b32 s7, s6, 2"); A("  s_add_u32 s7, s7, s12"); A("  s_lshl_b32 s7, s7, 8"); A("  s_add_u32 s7, s7, 0x33000000")
        A("  v_lshlrev_b32 v1, 2, v0")
        A(f"  buffer_store_dword v{T}, v1, {WS}, s7 offen")
        A("  s_waitcnt vmcnt(0)")
    A(f"  v_mov_b32_dpp v{T+1}, v{T} quad_perm:[1,0,3,2] row_mask:0xf bank_mask:0xf")
    A(f"  v_cvt_pk_bf16_f32 v{T}, v{T}, v{T+1}")
    A(f"  ds_bpermute_b32 v{T+2}, v7, v{T}")
    A("  v_add_u32 v7, 128, v7")
    A(f"  ds_bpermute_b32 v{T+3}, v7, v{T}")
    ZS = 16
    for k in range(16): A(f"  v_readlane_b32 s{ZS+k}, v{T}, {2*k if k < 8 else 32 + 2*(k-8)}")
    for k in range(16):
        for i in range(4):
            A(f"  v_dot2c_f32_bf16 v{OA+2*i}, s{ZS+k}, v{WT+8*k+i}")
            A(f"  v_dot2c_f32_bf16 v{OA+2*i+1}, s{ZS+k}, v{WT+8*k+4+i}")
    A("  s_waitcnt lgkmcnt(0)")
    for e in range(2):
        for i in range(4):
            A(f"  v_dot2c_f32_bf16 v{OA+8+2*i}, v{T+2+e}, v{WT+128+8*e+i}")
            A(f"  v_dot2c_f32_bf16 v{OA+8+2*i+1}, v{T+2+e}, v{WT+128+8*e+4+i}")
    A("  s_mul_i32 s7, s12, 2304")
    A("  v_lshl_add_u32 v1, v0, 5, s7")
    A(f"  ds_write_b128 v1, v[{OA}:{OA+3}] offset:{OUTP}")
    A(f"  ds_write_b128 v1, v[{OA+4}:{OA+7}] offset:{OUTP+16}")
    E = OA + 8
    for j in range(4): A(f"  v_permlane32_swap_b32 v{E+j}, v{E+j+4}")
    for j in range(4): A(f"  v_add_f32 v{E+j}, v{E+j}, v{E+j+4}")
    for j in range(2): A(f"  v_permlane16_swap_b32 v{E+j}, v{E+j+2}")
    for j in range(2): A(f"  v_add_f32 v{E+j}, v{E+j}, v{E+j+2}")
    A(f"  v_add_f32_dpp v{E}, v{E}, v{E} row_ror:8 row_mask:0xf bank_mask:0x3")
    A(f"  v_add_f32_dpp v{E}, v{E+1}, v{E+1} row_ror:8 row_mask:0xf bank_mask:0xc")
    A("  v_and_b32 v1, 7, v0"); A("  v_lshlrev_b32 v1, 3, v1")
    A("  v_bfe_u32 v5, v0, 3, 1"); A("  v_add_u32 v1, v1, v5"); A("  v_lshl_add_u32 v1, v3, 1, v1")
    A("  v_lshl_add_u32 v1, v1, 2, s7")
    A(f"  ds_write_b32 v1, v{E} offset:{OUTP+2048}")
    A("  s_waitcnt lgkmcnt(0)")
    A("  s_barrier")

    A("L_final:")
    F = 24
    A("  s_mov_b32 s84, s42"); A("  s_mov_b32 s85, s43"); A("  s_mov_b32 s86, 0x40000000"); A("  s_mov_b32 s87, 0x20000")
    A("  s_mul_i32 s7, s3, 288")
    A("  v_lshl_add_u32 v1, v0, 4, s7")
    A("  v_cmp_gt_u32 vcc, 18, v0")
    A("  s_and_saveexec_b64 s[10:11], vcc")
    for w in range(4): A(f"  ds_read_b128 v[{F+4*w}:{F+4*w+3}], v1 offset:{OUTP+2304*w}")
    A("  s_lshl_b32 s7, s5, 3"); A("  s_add_u32 s7, s7, s3")
    A("  s_lshl_b32 s12, s7, 14")
    A("  s_lshl_b32 s13, s4, 9"); A("  s_add_u32 s13, s13, s12")
    A("  s_waitcnt lgkmcnt(0)")
    for k in range(4):
        A(f"  v_add_f32 v{F+k}, v{F+k}, v{F+4+k}"); A(f"  v_add_f32 v{F+8+k}, v{F+8+k}, v{F+12+k}")
    for k in range(4): A(f"  v_add_f32 v{F+k}, v{F+k}, v{F+8+k}")
    A(f"  buffer_store_dwordx4 v[{F}:{F+3}], v2, {WS}, s13 offen sc1")
    A("  s_waitcnt vmcnt(0)")
    A("  s_mov_b64 exec, -1")
    A("  s_barrier")
    A("  s_cmp_lg_u32 s3, 0")
    A("  s_cbranch_scc1 L_wait6")
    A("  s_mov_b64 exec, 1")
    A("  s_lshl_b32 s7, s5, 5")
    A("  v_mov_b32 v5, s7"); A("  v_mov_b32 v6, 1")
    A(f"  global_atomic_add v7, v5, v6, s[40:41] {atom_flags}")
    A(f"  v_mov_b32 v5, {LAST}")
    A("  s_waitcnt vmcnt(0)")
    A("  ds_write_b32 v5, v7")
    A("  s_waitcnt lgkmcnt(0)")
    A("  s_mov_b64 exec, -1")
    A("L_wait6:")
    A("  s_barrier")
    A(f"  v_mov_b32 v5, {LAST}")
    A("  ds_read_b32 v7, v5")
    A(f"  ds_read_b32 v8, v5 offset:{GATE-LAST}" if GATE >= LAST else f"  v_mov_b32 v5, {GATE}\n  ds_read_b32 v8, v5\n")
    A("  s_waitcnt lgkmcnt(0)")
    A("  v_readfirstlane_b32 s7, v7")
    A("  s_cmp_lg_u32 s7, 31")
    A("  s_cbranch_scc1 L_fin")
    A("  s_mov_b64 exec, 0x3ffff")
    G = 24
    for hh in range(32):
        if hh % 8 == 0 and hh: A("  s_add_u32 s12, s12, 4096")
        A(f"  buffer_load_dwordx4 v[{G+4*hh}:{G+4*hh+3}], v2, {WS}, s12 offen offset:{512*(hh%8)} sc1")
    A("  s_mov_b32 s80, s34"); A("  s_mov_b32 s81, s35"); A("  s_mov_b32 s82, 1152"); A("  s_mov_b32 s83, 0x20000")
    A("  s_mul_i32 s11, s3, 144")
    A("  v_lshlrev_b32 v1, 3, v0")
    A(f"  buffer_load_dwordx2 v[10:11], v1, {B2}, s11 offen")
    A("  s_mov_b32 s88, s38"); A("  s_mov_b32 s89, s39"); A("  s_mov_b32 s90, 9216"); A("  s_mov_b32 s91, 0x20000")
    A(f"  v_sub_f32 v8, 1.0, v8")
    for hh in range(1, 32):
        A(f"  s_waitcnt vmcnt({32-hh})")
        for k in range(4): A(f"  v_add_f32 v{G+k}, v{G+k}, v{G+4*hh+k}")
    A("  s_waitcnt vmcnt(0)")
    A(f"  v_lshlrev_b32 v{T}, 16, v10"); A(f"  v_and_b32 v{T+1}, {sMASK}, v10")
    A(f"  v_lshlrev_b32 v{T+2}, 16, v11"); A(f"  v_and_b32 v{T+3}, {sMASK}, v11")
    for k in range(4): A(f"  v_fmac_f32 v{G+k}, v8, v{T+k}")
    A(f"  v_cvt_pk_bf16_f32 v{T}, v{G}, v{G+1}"); A(f"  v_cvt_pk_bf16_f32 v{T+1}, v{G+2}, v{G+3}")
    A("  s_mul_i32 s7, s5, 1152"); A("  s_mul_i32 s12, s3, 144"); A("  s_add_u32 s7, s7, s12")
    A(f"  buffer_store_dwordx2 v[{T}:{T+1}], v1, {OUT}, s7 offen")
    A("L_fin:")
    if stamps:
        A("  s_mov_b64 exec, 1")
        A("  s_memrealtime s[12:13]")
        A("  s_waitcnt lgkmcnt(0) vmcnt(0)")
        A("  s_and_b32 s7, s3, 3"); A("  s_cmp_lg_u32 s7, 0"); A("  s_cbranch_scc1 L_end")
        A("  s_lshl_b32 s7, s2, 8"); A("  s_add_u32 s7, s7, 0x20000000")
        A("  s_lshl_b32 s10, s3, 5"); A("  s_add_u32 s7, s7, s10")
        A("  v_mov_b32 v1, 0")
        A("  v_mov_b32 v4, s98"); A("  v_mov_b32 v5, s99"); A("  v_mov_b32 v6, s12"); A("  v_mov_b32 v7, s13")
        A(f"  buffer_store_dwordx4 v[4:7], v1, {WS}, s7 offen")
        A("  s_getreg_b32 s13, hwreg(HW_REG_XCC_ID)")
        A("  v_mov_b32 v8, s13"); A("  v_mov_b32 v9, 0"); A("  v_mov_b32 v10, s100"); A("  v_mov_b32 v11, s101")
        A(f"  buffer_store_dwordx4 v[8:11], v1, {WS}, s7 offen offset:16")
        A("  s_cmp_lg_u32 s3, 0"); A("  s_cbranch_scc1 L_sth")
        for i, r in enumerate(STR):
            A(f"  v_mov_b32 v12, s{r}"); A(f"  v_mov_b32 v13, s{r+1}")
            A(f"  buffer_store_dwordx2 v[12:13], v1, {WS}, s7 offen offset:{32+8*i}")
            A("  s_nop 1")
        A("  s_branch L_end")
        A("L_sth:")
        for i, r in enumerate(STH[:3]):
            A(f"  v_mov_b32 v12, s{r}"); A(f"  v_mov_b32 v13, s{r+1}")
            A(f"  buffer_store_dwordx2 v[12:13], v1, {WS}, s7 offen offset:{32+8*i}")
            A("  s_nop 1")
    A("L_end:")
    A("  s_endpgm")
    A('.section .rodata,"a"'); A(".p2align 6"); A(f".amdhsa_kernel {KN}")
    A("  .amdhsa_next_free_vgpr 256"); A("  .amdhsa_next_free_sgpr 102"); A("  .amdhsa_accum_offset 256")
    A("  .amdhsa_group_segment_fixed_size 0"); A("  .amdhsa_kernarg_size 112"); A("  .amdhsa_user_sgpr_count 2")
    A("  .amdhsa_user_sgpr_kernarg_segment_ptr 1"); A("  .amdhsa_system_sgpr_workgroup_id_x 1"); A(".end_amdhsa_kernel")
    return A.fix()

if __name__ == "__main__":
    import argparse
    ap = argparse.ArgumentParser()
    ap.add_argument("-o", default="k.s")
    ap.add_argument("--R", type=int, default=5)
    ap.add_argument("--stamps", action="store_true")
    ap.add_argument("--dbg", action="store_true")
    ap.add_argument("--wflags", default="nt")
    ap.add_argument("--npre", type=int, default=32)
    a = ap.parse_args()
    open(a.o, "w").write(gen(R=a.R, stamps=a.stamps, dbg=a.dbg, wflags=a.wflags, NPRE=a.npre))
    print("wrote", a.o)
```

```python
import sys, math, struct
from asmlib import Asm

KN = "gated_mix__mha_block_cached__mixer_channel_mlp__decode_kernel"
HEADER = open("gated_mix__mha_block_cached__mixer_channel_mlp__decode.s.ref").read().split("; Override launch")[0]
f2u = lambda x: "0x%08x" % struct.unpack("<I", struct.pack("<f", x))[0]

QP   = 0
OP   = 2048
SC   = 4096
ML   = SC + 16384
GATE = ML + 32
HCNT = GATE + 4
LAST = GATE + 8
YL   = ML + 64
HP   = YL + 2560
OUTP = HP + 6912
LDS_TOTAL = OUTP + 9216

def gen(R=5, kvflags="nt", vflags=None, wflags="nt", stamps=False, dbg=False, atom_flags="sc0 sc1", NPRE=32, HRW=8, H2=6):
    A = Asm()
    S = 8
    if vflags is None: vflags = kvflags
    STR = [56, 58, 60, 62, 64, 66]
    STH = [44, 46, 14, 56, 58, 8]
    def stamp(regs, i):
        if stamps:
            A(f"  s_memrealtime s[{regs[i]}:{regs[i]+1}]"); A("  s_waitcnt lgkmcnt(0)")
    A(HEADER.rstrip())
    A(f"; @launch grid=(256,1,1) block=(512,1,1) lds={LDS_TOTAL}")
    A('.amdgcn_target "amdgcn-amd-amdhsa--gfx950"')
    A(".text"); A(f".globl {KN}"); A(".p2align 8"); A(f".type {KN},@function"); A(f"{KN}:")
    KV = "s[44:47]"; WQ = "s[48:51]"; XA = "s[52:55]"; GW = "s[60:63]"; W1 = "s[64:67]"
    B1 = "s[68:71]"; W2 = "s[72:75]"; WO = "s[76:79]"; B2 = "s[80:83]"; WS = "s[84:87]"; OUT = "s[88:91]"
    sMASK = "s92"; sM2 = "s[94:95]"; sM1 = "s[96:97]"
    ACC = 8
    T = 16
    RING = 24
    PRE = 56
    SCR = 184
    Q = 200
    vP, vPn, vSC, vRG = "v204", "v205", "v206", "v207"
    AV = 208
    WT = 24
    HRING = 168
    HS = 200
    OA = 216
    HX = 232
    vG_, v1mG, vZ = "v246", "v247", "v248"
    PL = 168
    ring = lambda s: f"v[{RING+4*(s%S)}:{RING+4*(s%S)+3}]"
    pre = lambda t: f"v[{PRE+4*t}:{PRE+4*t+3}]"
    wt = lambda i: f"v[{WT+4*i}:{WT+4*i+3}]"
    def ktile(t):
        return pre(t) if t < NPRE else ring(t)

    A("  s_cmp_ge_u32 s2, 256")
    A("  s_cbranch_scc1 L_end")
    A("  s_load_dwordx16 s[16:31], s[0:1], 0")
    A("  s_load_dwordx8 s[32:39], s[0:1], 64")
    A("  s_load_dwordx4 s[40:43], s[0:1], 96")
    if stamps: A("  s_memrealtime s[98:99]")
    A("  v_lshrrev_b32 v1, 6, v0")
    A("  v_and_b32 v0, 63, v0")
    A("  v_lshlrev_b32 v2, 4, v0")
    A("  v_readfirstlane_b32 s3, v1")
    A("  s_and_b32 s4, s2, 7")
    A("  s_lshl_b32 s4, s4, 2")
    A("  s_bfe_u32 s7, s2, 0x20003")
    A("  s_or_b32 s4, s4, s7")
    A("  s_lshr_b32 s5, s2, 5")
    A("  s_lshl_b32 s6, s5, 5")
    A("  s_or_b32 s6, s6, s4")
    A("  s_lshl_b32 s9, s6, 20")
    A("  s_lshl_b32 s13, s3, 10")
    A("  s_mov_b32 s46, 0x100000"); A("  s_mov_b32 s47, 0x20000")
    A("  v_lshrrev_b32 v3, 4, v0")
    A("  v_and_b32 v4, 15, v0")
    A("  s_mov_b32 s92, 0xffff0000")
    A("  s_mov_b32 s8, s13")
    A("  s_cmp_ge_u32 s3, 4")
    A("  s_cbranch_scc1 L_helper")
    A("  s_waitcnt lgkmcnt(0)")
    A("  s_add_u32 s44, s18, s9"); A("  s_addc_u32 s45, s19, 0")
    for t in range(R):
        A(f"  buffer_load_dwordx4 {ktile(t)}, v2, {KV}, s8 offen {kvflags}")
        A("  s_addk_i32 s8, 4096")
    A("  s_add_u32 s14, s20, s9"); A("  s_addc_u32 s15, s21, 0")
    A("  v_and_b32 v1, 2, v0"); A(f"  v_cmp_ne_u32 {sM2}, 0, v1")
    A("  v_and_b32 v1, 1, v0"); A(f"  v_cmp_ne_u32 {sM1}, 0, v1")
    A("  v_lshlrev_b32 v5, 5, v4"); A("  v_lshl_add_u32 v5, v3, 3, v5")
    A("  s_lshl_b32 s7, s3, 9"); A(f"  v_add_u32 {vRG}, s7, v5")
    A("  s_lshl_b32 s7, s3, 12"); A(f"  v_lshl_add_u32 {vSC}, v0, 2, s7")
    for k in range(8): A(f"  v_mov_b32 v{AV+k}, 0")
    for t in range(NPRE):
        A(f"  s_waitcnt vmcnt({R-1})")
        A(f"  buffer_load_dwordx4 {ktile(t+R)}, v2, {KV}, s8 offen {kvflags}")
        A("  s_addk_i32 s8, 4096")
    stamp(STR, 4)
    A("  s_barrier")
    A("  v_lshlrev_b32 v5, 5, v4")
    QT = SCR
    for w in range(2):
        A(f"  ds_read_b128 v[{SCR+8*w}:{SCR+8*w+3}], v5 offset:{QP+512*w}")
        A(f"  ds_read_b128 v[{SCR+8*w+4}:{SCR+8*w+7}], v5 offset:{QP+512*w+16}")
    A(f"  ds_read_b128 v[{ACC}:{ACC+3}], v5 offset:{QP+1024}")
    A(f"  ds_read_b128 v[{ACC+4}:{ACC+7}], v5 offset:{QP+1024+16}")
    A(f"  ds_read_b128 v[{T}:{T+3}], v5 offset:{QP+1536}")
    A(f"  ds_read_b128 v[{T+4}:{T+7}], v5 offset:{QP+1536+16}")
    A("  s_waitcnt lgkmcnt(0)")
    for k in range(8):
        A(f"  v_add_f32 v{SCR+k}, v{SCR+k}, v{SCR+8+k}")
        A(f"  v_add_f32 v{ACC+k}, v{ACC+k}, v{T+k}")
    for k in range(8): A(f"  v_add_f32 v{SCR+k}, v{SCR+k}, v{ACC+k}")
    for k in range(4): A(f"  v_cvt_pk_bf16_f32 v{Q+k}, v{SCR+2*k}, v{SCR+2*k+1}")
    if dbg:
        A("  s_cmp_lg_u32 s3, 0"); A("  s_cbranch_scc1 L_dq")
        A("  s_mov_b32 s84, s42"); A("  s_mov_b32 s85, s43"); A("  s_mov_b32 s86, 0x40000000"); A("  s_mov_b32 s87, 0x20000")
        A("  s_lshl_b32 s7, s6, 8"); A("  s_add_u32 s7, s7, 0x30000000")
        A("  v_lshlrev_b32 v1, 4, v4")
        A(f"  buffer_store_dwordx4 v[{Q}:{Q+3}], v1, {WS}, s7 offen")
        A("  s_waitcnt vmcnt(0)")
        A("L_dq:")
    stamp(STR, 0)
    a = lambda i: f"v{SCR+i}"
    def kdots(u, r):
        for k in range(4):
            c = "0" if k == 0 else a(u)
            A(f"  v_dot2_f32_bf16 {a(u)}, v{r+k}, v{Q+k}, {c}")
    def kreduce():
        for i in range(8):
            A(f"  v_add_f32_dpp {a(i)}, {a(i)}, {a(i)} row_ror:8 row_mask:0xf bank_mask:0x3")
            A(f"  v_add_f32_dpp {a(i)}, {a(i+8)}, {a(i+8)} row_ror:8 row_mask:0xf bank_mask:0xc")
        for i in range(4):
            A(f"  v_add_f32_dpp {a(i)}, {a(i)}, {a(i)} row_shl:4 row_mask:0xf bank_mask:0x5")
            A(f"  v_add_f32_dpp {a(i)}, {a(i+4)}, {a(i+4)} row_shr:4 row_mask:0xf bank_mask:0xa")
        for i in range(2):
            A(f"  v_cndmask_b32 v{T+i}, {a(i)}, {a(i+2)}, {sM2}")
            A(f"  v_cndmask_b32 v{T+2+i}, {a(i+2)}, {a(i)}, {sM2}")
        for i in range(2):
            A(f"  v_add_f32_dpp v{T+i}, v{T+2+i}, v{T+i} quad_perm:[2,3,0,1] row_mask:0xf bank_mask:0xf")
        A(f"  v_cndmask_b32 v{T+4}, v{T}, v{T+1}, {sM1}")
        A(f"  v_cndmask_b32 v{T+5}, v{T+1}, v{T}, {sM1}")
        A(f"  v_add_f32_dpp v{T+4}, v{T+5}, v{T+4} quad_perm:[1,0,3,2] row_mask:0xf bank_mask:0xf")
        A(f"  ds_write_b32 {vSC}, v{T+4} offset:{SC}")
        A(f"  v_add_u32 {vSC}, 256, {vSC}")
    for blk in range(NPRE // 16):
        for u in range(16): kdots(u, PRE + 4 * (16 * blk + u))
        kreduce()
    A(f"  s_mov_b32 s12, {NPRE//16}")
    A("L_kloop:")
    for u in range(16):
        A(f"  s_waitcnt vmcnt({R-1})")
        if u + R == 16:
            A("  s_cmp_eq_u32 s12, 15")
            A("  s_cselect_b32 s44, s14, s44"); A("  s_cselect_b32 s45, s15, s45"); A("  s_cselect_b32 s8, s13, s8")
        A(f"  buffer_load_dwordx4 {ring(u+R)}, v2, {KV}, s8 offen {kvflags}")
        A("  s_addk_i32 s8, 4096")
        kdots(u, RING + 4 * (u % S))
    kreduce()
    A("  s_add_u32 s12, s12, 1")
    A("  s_cmp_lt_u32 s12, 16")
    A("  s_cbranch_scc1 L_kloop")
    stamp(STR, 1)
    A(f"  v_subrev_u32 {vSC}, 4096, {vSC}")
    A("  s_waitcnt lgkmcnt(0)")
    for i in range(16): A(f"  ds_read_b32 {a(i)}, {vSC} offset:{SC+256*i}")
    A("  s_waitcnt lgkmcnt(0)")
    if dbg:
        A("  s_mov_b32 s84, s42"); A("  s_mov_b32 s85, s43"); A("  s_mov_b32 s86, 0x40000000"); A("  s_mov_b32 s87, 0x20000")
        A("  s_lshl_b32 s7, s6, 2"); A("  s_add_u32 s7, s7, s3"); A("  s_lshl_b32 s7, s7, 12"); A("  s_add_u32 s7, s7, 0x31000000")
        A("  v_lshlrev_b32 v1, 2, v0")
        for i in range(16): A(f"  buffer_store_dword {a(i)}, v1, {WS}, s7 offen offset:{256*i}")
        A("  s_waitcnt vmcnt(0)")
    t0, t1 = f"v{T}", f"v{T+1}"
    A(f"  v_max3_f32 {t0}, {a(0)}, {a(1)}, {a(2)}")
    for i in range(3, 15, 2): A(f"  v_max3_f32 {t0}, {t0}, {a(i)}, {a(i+1)}")
    A(f"  v_max_f32 {t0}, {t0}, {a(15)}")
    def allreduce(op, v, tmp):
        for sh in (8, 4, 2, 1):
            A(f"  {op}_dpp {v}, {v}, {v} row_ror:{sh} row_mask:0xf bank_mask:0xf")
        A(f"  v_mov_b32 {tmp}, {v}"); A(f"  v_permlane16_swap_b32 {v}, {tmp}"); A(f"  {op} {v}, {v}, {tmp}")
        A(f"  v_mov_b32 {tmp}, {v}"); A(f"  v_permlane32_swap_b32 {v}, {tmp}"); A(f"  {op} {v}, {v}, {tmp}")
    allreduce("v_max_f32", t0, t1)
    SC2 = (128 ** -0.5) * math.log2(math.e)
    A(f"  s_mov_b32 s7, {f2u(SC2)}")
    A(f"  v_mul_f32 {t0}, s7, {t0}")
    for i in range(16): A(f"  v_fma_f32 {a(i)}, {a(i)}, s7, -{t0}")
    for i in range(16): A(f"  v_exp_f32 {a(i)}, {a(i)}")
    for i in range(16): A(f"  ds_write_b32 {vSC}, {a(i)} offset:{SC+256*i}")
    A(f"  v_mov_b32 {vP}, {a(0)}")
    A(f"  v_add_f32 v{T+2}, {a(0)}, {a(1)}")
    for i in range(2, 16): A(f"  v_add_f32 v{T+2}, v{T+2}, {a(i)}")
    allreduce("v_add_f32", f"v{T+2}", f"v{T+3}")
    A(f"  v_mov_b32 v{T+1}, v{T+2}")
    A("  s_lshl_b32 s7, s3, 3")
    A(f"  v_mov_b32 v1, s7")
    A(f"  ds_write_b64 v1, v[{T}:{T+1}] offset:{ML}")
    A("  s_mov_b32 s12, 0")
    stamp(STR, 2)
    def unpack(r):
        for k in range(4):
            A(f"  v_lshlrev_b32 v{T+2*k}, 16, v{r+k}")
            A(f"  v_and_b32 v{T+2*k+1}, {sMASK}, v{r+k}")
    A("L_vloop:")
    A(f"  v_add_u32 {vSC}, 256, {vSC}")
    A(f"  ds_read_b32 {vPn}, {vSC} offset:{SC}")
    for u in range(16):
        A(f"  s_waitcnt vmcnt({R-1})")
        A(f"  buffer_load_dwordx4 {ring(u+R)}, v2, {KV}, s8 offen {vflags}")
        A("  s_addk_i32 s8, 4096")
        unpack(RING + 4 * (u % S))
        for k in range(8):
            A(f"  v_fmac_f32_dpp v{AV+k}, {vP}, v{T+k} row_newbcast:{u} row_mask:0xf bank_mask:0xf")
    A("  s_waitcnt lgkmcnt(0)")
    A(f"  v_mov_b32 {vP}, {vPn}")
    A("  s_add_u32 s12, s12, 1")
    A("  s_cmp_lt_u32 s12, 16")
    A("  s_cbranch_scc1 L_vloop")
    stamp(STR, 3)
    def reduce_g(a_):
        for j in range(4): A(f"  v_permlane32_swap_b32 v{a_+j}, v{a_+j+4}")
        for j in range(4): A(f"  v_add_f32 v{a_+j}, v{a_+j}, v{a_+j+4}")
        for j in range(2): A(f"  v_permlane16_swap_b32 v{a_+j}, v{a_+j+2}")
        for j in range(2): A(f"  v_add_f32 v{a_+j}, v{a_+j}, v{a_+j+2}")
    reduce_g(AV)
    A(f"  ds_write_b64 {vRG}, v[{AV}:{AV+1}] offset:{OP}")
    A("  s_waitcnt lgkmcnt(0)")
    A("  s_barrier")
    A("  s_barrier")
    A("  s_branch L_final")

    A("L_helper:")
    A("  s_sub_u32 s12, s3, 4")
    A("  s_mul_i32 s7, s5, 1152")
    A("  v_lshlrev_b32 v5, 3, v4"); A("  v_lshl_add_u32 v5, v3, 1, v5")
    A("  v_lshlrev_b32 v1, 4, v4"); A("  v_lshl_add_u32 v1, v3, 13, v1")
    A(f"  s_mul_i32 s10, s12, {144*8192}"); A("  s_lshl_b32 s11, s4, 8"); A("  s_add_u32 s10, s10, s11")
    A("  s_mul_i32 s11, s12, 288")
    A(f"  s_mov_b32 s50, {576*8192}"); A("  s_mov_b32 s51, 0x20000")
    A("  s_mov_b32 s54, 1152"); A("  s_mov_b32 s55, 0x20000")
    A("  s_waitcnt lgkmcnt(0)")
    A("  s_add_u32 s52, s16, s7"); A("  s_addc_u32 s53, s17, 0")
    A("  s_mov_b32 s48, s22"); A("  s_mov_b32 s49, s23")
    for k in range(3):
        A(f"  buffer_load_ushort v{5+0 if False else 0+ (6 if k==0 else 7 if k==1 else 8)}, v5, {XA}, s11 offen offset:{128*k}")
    for i in range(36):
        A(f"  buffer_load_dwordx4 {wt(i)}, v1, {WQ}, s10 offen {wflags}")
        if i < 35: A("  s_add_u32 s10, s10, 32768")
    A("  s_mov_b32 s60, s36"); A("  s_mov_b32 s61, s37"); A("  s_mov_b32 s62, 1152"); A("  s_mov_b32 s63, 0x20000")
    A("  s_mov_b32 s68, s30"); A("  s_mov_b32 s69, s31"); A("  s_mov_b32 s70, 9216"); A("  s_mov_b32 s71, 0x20000")
    A("  s_mov_b32 s80, s34"); A("  s_mov_b32 s81, s35"); A("  s_mov_b32 s82, 1152"); A("  s_mov_b32 s83, 0x20000")
    A("  v_lshlrev_b32 v1, 2, v0")
    for k in range(5): A(f"  buffer_load_dword v{HX+k}, v1, {XA}, 0 offen offset:{256*k}")
    for k in range(5): A(f"  buffer_load_dword v{HX+5+k}, v1, {GW}, 0 offen offset:{256*k}")
    A("  s_mul_i32 s10, s4, 288"); A("  s_mul_i32 s11, s12, 72"); A("  s_add_u32 s10, s10, s11")
    A("  v_lshlrev_b32 v1, 1, v0")
    A(f"  buffer_load_ushort v{HX+10}, v1, {B1}, s10 offen")
    NYOUNG = 11
    A("  s_mov_b32 s76, s24"); A("  s_mov_b32 s77, s25"); A(f"  s_mov_b32 s78, {4096*1152}"); A("  s_mov_b32 s79, 0x20000")
    for k in range(16): A(f"  v_mov_b32 v{OA+k}, 0")
    A(f"  s_waitcnt vmcnt({36+NYOUNG})")
    for k in range(3): A(f"  v_lshlrev_b32 v{6+k}, 16, v{6+k}")
    QA = HS
    for i in range(36):
        A(f"  s_waitcnt vmcnt({35-i+NYOUNG})")
        unpack(WT + 4 * i)
        src = f"v{6 + i // 16}"
        for k in range(8):
            op = "v_mul_f32_dpp" if i == 0 else "v_fmac_f32_dpp"
            A(f"  {op} v{QA+k}, {src}, v{T+k} row_newbcast:{i%16} row_mask:0xf bank_mask:0xf")
    reduce_g(QA)
    A("  v_lshlrev_b32 v5, 5, v4"); A("  v_lshl_add_u32 v5, v3, 3, v5")
    A("  s_lshl_b32 s7, s12, 9"); A("  v_add_u32 v5, s7, v5")
    A(f"  ds_write_b64 v5, v[{QA}:{QA+1}] offset:{QP}")
    A("  v_mov_b32 v1, 0"); A(f"  v_mov_b32 v5, {HCNT}")
    A("  ds_write_b32 v5, v1")
    A("  s_waitcnt lgkmcnt(0)")
    A("  s_barrier")
    stamp(STH, 2)
    X = HS
    A("  s_waitcnt vmcnt(0)")
    for k in range(5):
        A(f"  v_lshlrev_b32 v{X+2*k}, 16, v{HX+k}")
        A(f"  v_and_b32 v{X+2*k+1}, {sMASK}, v{HX+k}")
    A(f"  v_add_f32 {t0}, v{X}, v{X+1}")
    for k in range(2, 10): A(f"  v_add_f32 {t0}, {t0}, v{X+k}")
    allreduce("v_add_f32", t0, t1)
    A(f"  v_mul_f32 {t0}, {f2u(1.0/576)}, {t0}")
    for k in range(10): A(f"  v_sub_f32 v{X+k}, v{X+k}, {t0}")
    A("  v_cmp_gt_u32 vcc, 32, v0")
    A(f"  v_cndmask_b32 v{X+8}, 0, v{X+8}, vcc"); A(f"  v_cndmask_b32 v{X+9}, 0, v{X+9}, vcc")
    A(f"  v_mul_f32 {t0}, v{X}, v{X}")
    for k in range(1, 10): A(f"  v_fmac_f32 {t0}, v{X+k}, v{X+k}")
    allreduce("v_add_f32", t0, t1)
    A(f"  v_mov_b32 {t1}, {f2u(1e-5)}")
    A(f"  v_fmac_f32 {t1}, {f2u(1.0/576)}, {t0}")
    A(f"  v_rsq_f32 {t1}, {t1}")
    for k in range(10): A(f"  v_mul_f32 v{X+k}, v{X+k}, {t1}")
    A("  v_lshlrev_b32 v1, 3, v0")
    for k in range(5): A(f"  ds_write_b64 v1, v[{X+2*k}:{X+2*k+1}] offset:{YL+512*k}")
    A(f"  v_dot2_f32_bf16 {t0}, v{HX}, v{HX+5}, 0")
    for k in range(1, 5): A(f"  v_dot2_f32_bf16 {t0}, v{HX+k}, v{HX+5+k}, {t0}")
    allreduce("v_add_f32", t0, t1)
    A(f"  v_mul_f32 {t0}, {f2u(-math.log2(math.e))}, {t0}")
    A(f"  v_exp_f32 {t0}, {t0}")
    A(f"  v_add_f32 {t0}, 1.0, {t0}")
    A(f"  v_rcp_f32 {vG_}, {t0}")
    A(f"  v_sub_f32 {v1mG}, 1.0, {vG_}")
    A(f"  v_mov_b32 v1, {GATE}")
    A(f"  ds_write_b32 v1, {vG_}")
    A("  v_mul_u32_u24 v5, 57, v0"); A("  v_lshrrev_b32 v5, 10, v5")
    A("  v_mul_u32_u24 v6, 18, v5"); A("  v_sub_u32 v6, v0, v6")
    A("  v_mul_u32_u24 v7, 9216, v5"); A("  v_lshl_add_u32 v7, v6, 4, v7")
    A("  s_mov_b32 s64, s28"); A("  s_mov_b32 s65, s29"); A(f"  s_mov_b32 s66, {576*9216}"); A("  s_mov_b32 s67, 0x20000")
    A(f"  s_mul_i32 s10, s12, {144*9216}"); A("  s_mul_i32 s11, s4, 288"); A("  s_add_u32 s10, s10, s11")
    A("  s_mul_i32 s11, s12, 576")
    A("  v_lshl_add_u32 v1, v5, 2, s11")
    hring = lambda s: f"v[{HRING+4*s}:{HRING+4*s+3}]"
    for u in range(HRW):
        A(f"  buffer_load_dwordx4 {hring(u)}, v7, {W1}, s10 offen {wflags}")
        A("  s_add_u32 s10, s10, 27648")
    for k in range(8): A(f"  v_mov_b32 v{ACC+k}, 0")
    A("  s_mov_b32 s11, 0")
    A("  s_waitcnt lgkmcnt(0)")
    A("L_w1:")
    for u in range(HRW): A(f"  ds_read_b32 v{HS+u}, v1 offset:{YL+12*u}")
    A(f"  v_add_u32 v1, {12*HRW}, v1")
    A(f"  s_cmp_eq_u32 s11, {48//HRW-1}")
    A("  s_cselect_b32 s10, 0x40000000, s10")
    A("  s_waitcnt lgkmcnt(0)")
    for u in range(HRW):
        A(f"  s_waitcnt vmcnt({HRW-1})")
        unpack(HRING + 4 * u)
        A(f"  buffer_load_dwordx4 {hring(u)}, v7, {W1}, s10 offen {wflags}")
        A("  s_add_u32 s10, s10, 27648")
        for k in range(8): A(f"  v_fmac_f32 v{ACC+k}, v{HS+u}, v{T+k}")
    A("  s_add_u32 s11, s11, 1")
    A(f"  s_cmp_lt_u32 s11, {48//HRW}")
    A("  s_cbranch_scc1 L_w1")
    stamp(STH, 0)
    A("  s_mul_i32 s11, s12, 3")
    A("  v_add_u32 v1, s11, v5"); A("  v_mul_u32_u24 v1, 576, v1"); A("  v_lshl_add_u32 v1, v6, 5, v1")
    A("  v_cmp_gt_u32 vcc, 54, v0")
    A("  s_and_saveexec_b64 s[10:11], vcc")
    A(f"  ds_write_b128 v1, v[{ACC}:{ACC+3}] offset:{HP}")
    A(f"  ds_write_b128 v1, v[{ACC+4}:{ACC+7}] offset:{HP+16}")
    A("  s_mov_b64 exec, 1")
    A(f"  v_mov_b32 v1, {HCNT}"); A("  v_mov_b32 v5, 1")
    A("  ds_add_u32 v1, v5")
    A("  s_mov_b64 exec, -1")
    A(f"  v_mov_b32 v1, {HCNT}")
    A("L_hspin:")
    A("  ds_read_b32 v5, v1")
    A("  s_waitcnt lgkmcnt(0)")
    A("  v_readfirstlane_b32 s10, v5")
    A("  s_cmp_ge_u32 s10, 4")
    A("  s_cbranch_scc1 L_hgo")
    A("  s_sleep 4")
    A("  s_branch L_hspin")
    A("L_hgo:")
    A("  s_mul_i32 s11, s12, 144")
    A("  v_min_u32 v1, 35, v0")
    A("  v_lshl_add_u32 v1, v1, 2, s11")
    for k in range(12): A(f"  ds_read_b32 v{HS+k}, v1 offset:{HP+576*k}")
    A(f"  v_lshlrev_b32 {t0}, 16, v{HX+10}")
    A("  s_waitcnt lgkmcnt(0)")
    for k in range(12): A(f"  v_add_f32 {t0}, {t0}, v{HS+k}")
    k0 = math.sqrt(2 / math.pi)
    A(f"  v_mul_f32 {t1}, {t0}, {t0}")
    A(f"  v_mov_b32 v{T+2}, {f2u(-2*k0*math.log2(math.e))}")
    A(f"  v_fmac_f32 v{T+2}, {f2u(-2*k0*0.044715*math.log2(math.e))}, {t1}")
    A(f"  v_mul_f32 v{T+2}, v{T+2}, {t0}")
    A(f"  v_exp_f32 v{T+2}, v{T+2}")
    A(f"  v_add_f32 v{T+2}, 1.0, v{T+2}")
    A(f"  v_rcp_f32 v{T+2}, v{T+2}")
    A(f"  v_mul_f32 {t0}, {t0}, v{T+2}")
    A(f"  v_mul_f32 {t0}, {v1mG}, {t0}")
    A("  v_cmp_gt_u32 vcc, 36, v0")
    A(f"  v_cndmask_b32 {vZ}, 0, {t0}, vcc")
    A("  s_mov_b32 s84, s42"); A("  s_mov_b32 s85, s43"); A("  s_mov_b32 s86, 0x40000000"); A("  s_mov_b32 s87, 0x20000")
    if dbg:
        A("  s_lshl_b32 s7, s6, 2"); A("  s_add_u32 s7, s7, s12"); A("  s_lshl_b32 s7, s7, 8"); A("  s_add_u32 s7, s7, 0x32000000")
        A("  v_lshlrev_b32 v1, 2, v0")
        A(f"  buffer_store_dword {vZ}, v1, {WS}, s7 offen")
        A("  s_waitcnt vmcnt(0)")
    A("  s_mul_i32 s10, s4, 144"); A("  s_mul_i32 s11, s12, 36"); A("  s_add_u32 s10, s10, s11"); A("  s_mul_i32 s10, s10, 1152")
    A("  s_add_u32 s72, s32, s10"); A("  s_addc_u32 s73, s33, 0"); A(f"  s_mov_b32 s74, {36*1152}"); A("  s_mov_b32 s75, 0x20000")
    A("  s_mov_b32 s10, 0")
    for u in range(H2):
        A(f"  buffer_load_dwordx4 {hring(u)}, v2, {W2}, s10 offen {wflags}")
        A("  s_addk_i32 s10, 1152")
    A("  s_mov_b32 s11, 0")
    A("L_w2:")
    for u in range(H2):
        A(f"  v_readlane_b32 s7, {vZ}, s11")
        A("  s_add_u32 s11, s11, 1")
        A(f"  s_waitcnt vmcnt({H2-1})")
        unpack(HRING + 4 * u)
        A(f"  buffer_load_dwordx4 {hring(u)}, v2, {W2}, s10 offen {wflags}")
        A("  s_addk_i32 s10, 1152")
        for k in range(8): A(f"  v_fmac_f32 v{OA+k}, s7, v{T+k}")
    A("  s_cmp_lt_u32 s11, 36")
    A("  s_cbranch_scc1 L_w2")
    stamp(STH, 1)
    A("  v_lshrrev_b32 v5, 3, v0"); A("  v_mul_u32_u24 v6, 1152, v5")
    A("  v_and_b32 v1, 7, v0"); A("  v_lshl_add_u32 v6, v1, 4, v6")
    A("  s_mov_b32 s10, 0")
    for e in range(5):
        A(f"  buffer_load_dwordx4 {wt(e)}, v6, {W2}, s10 offen offset:1024 {wflags}")
        A(f"  s_addk_i32 s10, {8*1152}")
    A("  v_lshlrev_b32 v5, 2, v5")
    for e in range(5):
        A(f"  ds_bpermute_b32 v{HS+e}, v5, {vZ}")
        A("  v_add_u32 v5, 32, v5")
    A("  s_waitcnt lgkmcnt(0)")
    for e in range(5):
        A(f"  s_waitcnt vmcnt({4-e})")
        unpack(WT + 4 * e)
        for k in range(8): A(f"  v_fmac_f32 v{OA+8+k}, v{HS+e}, v{T+k}")
    A("  s_lshl_b32 s10, s4, 7"); A("  s_lshl_b32 s11, s12, 5"); A("  s_add_u32 s10, s10, s11"); A("  s_mul_i32 s10, s10, 1152")
    A("  v_lshrrev_b32 v5, 3, v0"); A("  v_mul_u32_u24 v5, 2304, v5")
    A("  v_and_b32 v1, 7, v0"); A("  v_lshl_add_u32 v5, v1, 4, v5")
    for e in range(2):
        for par in range(2):
            A(f"  buffer_load_dwordx4 {wt(32+2*e+par)}, v5, {WO}, s10 offen offset:{1024+1152*par} {wflags}")
        if e == 0: A(f"  s_add_u32 s11, s10, {16*1152}"); A("  s_mov_b32 s7, s10"); A("  s_mov_b32 s10, s11")
    A("  s_mov_b32 s10, s7")
    for r in range(32):
        A(f"  buffer_load_dwordx4 {wt(r)}, v2, {WO}, s10 offen {wflags}")
        A("  s_addk_i32 s10, 1152")
    A("  s_mov_b32 s10, 0x05040100"); A("  s_mov_b32 s11, 0x07060302")
    A("  s_waitcnt vmcnt(0)")
    for k in range(18):
        for i in range(4):
            a_, b_ = WT + 8 * k + i, WT + 8 * k + 4 + i
            tmp = T + (i % 4)
            A(f"  v_perm_b32 v{tmp}, v{b_}, v{a_}, s10")
            A(f"  v_perm_b32 v{b_}, v{b_}, v{a_}, s11")
            A(f"  v_mov_b32 v{a_}, v{tmp}")
    A("  s_lshl_b32 s7, s12, 7")
    A("  v_lshlrev_b32 v1, 9, v3"); A("  v_lshl_add_u32 v1, v4, 2, v1"); A("  v_add_u32 v1, s7, v1")
    A("  v_mov_b32 v5, 0")
    A("  v_lshlrev_b32 v6, 3, v3")
    A("  v_lshrrev_b32 v7, 3, v0"); A("  v_lshlrev_b32 v7, 3, v7")
    A("  s_barrier")
    if stamps:
        A("  s_memrealtime s[100:101]"); A("  s_waitcnt lgkmcnt(0)")
    A(f"  ds_read_b32 v{T}, v1 offset:{OP}")
    A(f"  ds_read_b32 v{T+4}, v1 offset:{OP+64}")
    A(f"  ds_read_b128 v[{HS}:{HS+3}], v5 offset:{ML}")
    A(f"  ds_read_b128 v[{HS+4}:{HS+7}], v5 offset:{ML+16}")
    A(f"  ds_read_b32 v{T+1}, v6 offset:{ML}")
    A("  s_waitcnt lgkmcnt(0)")
    m0, l0, m1, l1, m2, l2, m3, l3 = [f"v{HS+i}" for i in range(8)]
    A(f"  v_max3_f32 v{T+2}, {m0}, {m1}, {m2}"); A(f"  v_max_f32 v{T+2}, v{T+2}, {m3}")
    for mm in (m0, m1, m2, m3, f"v{T+1}"): A(f"  v_sub_f32 {mm}, {mm}, v{T+2}")
    for mm in (m0, m1, m2, m3, f"v{T+1}"): A(f"  v_exp_f32 {mm}, {mm}")
    A(f"  v_mul_f32 v{T+3}, {m0}, {l0}")
    A(f"  v_fmac_f32 v{T+3}, {m1}, {l1}"); A(f"  v_fmac_f32 v{T+3}, {m2}, {l2}"); A(f"  v_fmac_f32 v{T+3}, {m3}, {l3}")
    A(f"  v_rcp_f32 v{T+3}, v{T+3}")
    A(f"  v_mul_f32 v{T}, v{T}, v{T+1}"); A(f"  v_mul_f32 v{T+4}, v{T+4}, v{T+1}")
    A(f"  v_mul_f32 v{T+3}, v{T+3}, {vG_}")
    A(f"  v_permlane32_swap_b32 v{T}, v{T+4}")
    A(f"  v_add_f32 v{T}, v{T}, v{T+4}")
    A(f"  v_mov_b32 v{T+1}, v{T}"); A(f"  v_permlane16_swap_b32 v{T}, v{T+1}"); A(f"  v_add_f32 v{T}, v{T}, v{T+1}")
    A(f"  v_mul_f32 v{T}, v{T}, v{T+3}")
    if dbg:
        A("  s_lshl_b32 s7, s6, 2"); A("  s_add_u32 s7, s7, s12"); A("  s_lshl_b32 s7, s7, 8"); A("  s_add_u32 s7, s7, 0x33000000")
        A("  v_lshlrev_b32 v1, 2, v0")
        A(f"  buffer_store_dword v{T}, v1, {WS}, s7 offen")
        A("  s_waitcnt vmcnt(0)")
    A(f"  v_mov_b32_dpp v{T+1}, v{T} quad_perm:[1,0,3,2] row_mask:0xf bank_mask:0xf")
    A(f"  v_cvt_pk_bf16_f32 v{T}, v{T}, v{T+1}")
    A(f"  ds_bpermute_b32 v{T+2}, v7, v{T}")
    A("  v_add_u32 v7, 128, v7")
    A(f"  ds_bpermute_b32 v{T+3}, v7, v{T}")
    ZS = 16
    for k in range(16): A(f"  v_readlane_b32 s{ZS+k}, v{T}, {2*k if k < 8 else 32 + 2*(k-8)}")
    for k in range(16):
        for i in range(4):
            A(f"  v_dot2c_f32_bf16 v{OA+2*i}, s{ZS+k}, v{WT+8*k+i}")
            A(f"  v_dot2c_f32_bf16 v{OA+2*i+1}, s{ZS+k}, v{WT+8*k+4+i}")
    A("  s_waitcnt lgkmcnt(0)")
    for e in range(2):
        for i in range(4):
            A(f"  v_dot2c_f32_bf16 v{OA+8+2*i}, v{T+2+e}, v{WT+128+8*e+i}")
            A(f"  v_dot2c_f32_bf16 v{OA+8+2*i+1}, v{T+2+e}, v{WT+128+8*e+4+i}")
    A("  s_mul_i32 s7, s12, 2304")
    A("  v_lshl_add_u32 v1, v0, 5, s7")
    A(f"  ds_write_b128 v1, v[{OA}:{OA+3}] offset:{OUTP}")
    A(f"  ds_write_b128 v1, v[{OA+4}:{OA+7}] offset:{OUTP+16}")
    E = OA + 8
    for j in range(4): A(f"  v_permlane32_swap_b32 v{E+j}, v{E+j+4}")
    for j in range(4): A(f"  v_add_f32 v{E+j}, v{E+j}, v{E+j+4}")
    for j in range(2): A(f"  v_permlane16_swap_b32 v{E+j}, v{E+j+2}")
    for j in range(2): A(f"  v_add_f32 v{E+j}, v{E+j}, v{E+j+2}")
    A(f"  v_add_f32_dpp v{E}, v{E}, v{E} row_ror:8 row_mask:0xf bank_mask:0x3")
    A(f"  v_add_f32_dpp v{E}, v{E+1}, v{E+1} row_ror:8 row_mask:0xf bank_mask:0xc")
    A("  v_and_b32 v1, 7, v0"); A("  v_lshlrev_b32 v1, 3, v1")
    A("  v_bfe_u32 v5, v0, 3, 1"); A("  v_add_u32 v1, v1, v5"); A("  v_lshl_add_u32 v1, v3, 1, v1")
    A("  v_lshl_add_u32 v1, v1, 2, s7")
    A(f"  ds_write_b32 v1, v{E} offset:{OUTP+2048}")
    A("  s_waitcnt lgkmcnt(0)")
    A("  s_barrier")

    A("L_final:")
    F = 24
    A("  s_mov_b32 s84, s42"); A("  s_mov_b32 s85, s43"); A("  s_mov_b32 s86, 0x40000000"); A("  s_mov_b32 s87, 0x20000")
    A("  s_mul_i32 s7, s3, 288")
    A("  v_lshl_add_u32 v1, v0, 4, s7")
    A("  v_cmp_gt_u32 vcc, 18, v0")
    A("  s_and_saveexec_b64 s[10:11], vcc")
    for w in range(4): A(f"  ds_read_b128 v[{F+4*w}:{F+4*w+3}], v1 offset:{OUTP+2304*w}")
    A("  s_lshl_b32 s7, s5, 3"); A("  s_add_u32 s7, s7, s3")
    A("  s_lshl_b32 s12, s7, 14")
    A("  s_lshl_b32 s13, s4, 9"); A("  s_add_u32 s13, s13, s12")
    A("  s_waitcnt lgkmcnt(0)")
    for k in range(4):
        A(f"  v_add_f32 v{F+k}, v{F+k}, v{F+4+k}"); A(f"  v_add_f32 v{F+8+k}, v{F+8+k}, v{F+12+k}")
    for k in range(4): A(f"  v_add_f32 v{F+k}, v{F+k}, v{F+8+k}")
    A(f"  buffer_store_dwordx4 v[{F}:{F+3}], v2, {WS}, s13 offen sc1")
    A("  s_waitcnt vmcnt(0)")
    A("  s_mov_b64 exec, -1")
    A("  s_barrier")
    A("  s_cmp_lg_u32 s3, 0")
    A("  s_cbranch_scc1 L_wait6")
    A("  s_mov_b64 exec, 1")
    A("  s_lshl_b32 s7, s5, 5")
    A("  v_mov_b32 v5, s7"); A("  v_mov_b32 v6, 1")
    A(f"  global_atomic_add v7, v5, v6, s[40:41] {atom_flags}")
    A(f"  v_mov_b32 v5, {LAST}")
    A("  s_waitcnt vmcnt(0)")
    A("  ds_write_b32 v5, v7")
    A("  s_waitcnt lgkmcnt(0)")
    A("  s_mov_b64 exec, -1")
    A("L_wait6:")
    A("  s_barrier")
    A(f"  v_mov_b32 v5, {LAST}")
    A("  ds_read_b32 v7, v5")
    A(f"  ds_read_b32 v8, v5 offset:{GATE-LAST}" if GATE >= LAST else f"  v_mov_b32 v5, {GATE}\n  ds_read_b32 v8, v5\n")
    A("  s_waitcnt lgkmcnt(0)")
    A("  v_readfirstlane_b32 s7, v7")
    A("  s_cmp_lg_u32 s7, 31")
    A("  s_cbranch_scc1 L_fin")
    A("  s_mov_b64 exec, 0x3ffff")
    G = 24
    for hh in range(32):
        if hh % 8 == 0 and hh: A("  s_add_u32 s12, s12, 4096")
        A(f"  buffer_load_dwordx4 v[{G+4*hh}:{G+4*hh+3}], v2, {WS}, s12 offen offset:{512*(hh%8)} sc1")
    A("  s_mov_b32 s80, s34"); A("  s_mov_b32 s81, s35"); A("  s_mov_b32 s82, 1152"); A("  s_mov_b32 s83, 0x20000")
    A("  s_mul_i32 s11, s3, 144")
    A("  v_lshlrev_b32 v1, 3, v0")
    A(f"  buffer_load_dwordx2 v[10:11], v1, {B2}, s11 offen")
    A("  s_mov_b32 s88, s38"); A("  s_mov_b32 s89, s39"); A("  s_mov_b32 s90, 9216"); A("  s_mov_b32 s91, 0x20000")
    A(f"  v_sub_f32 v8, 1.0, v8")
    for hh in range(1, 32):
        A(f"  s_waitcnt vmcnt({32-hh})")
        for k in range(4): A(f"  v_add_f32 v{G+k}, v{G+k}, v{G+4*hh+k}")
    A("  s_waitcnt vmcnt(0)")
    A(f"  v_lshlrev_b32 v{T}, 16, v10"); A(f"  v_and_b32 v{T+1}, {sMASK}, v10")
    A(f"  v_lshlrev_b32 v{T+2}, 16, v11"); A(f"  v_and_b32 v{T+3}, {sMASK}, v11")
    for k in range(4): A(f"  v_fmac_f32 v{G+k}, v8, v{T+k}")
    A(f"  v_cvt_pk_bf16_f32 v{T}, v{G}, v{G+1}"); A(f"  v_cvt_pk_bf16_f32 v{T+1}, v{G+2}, v{G+3}")
    A("  s_mul_i32 s7, s5, 1152"); A("  s_mul_i32 s12, s3, 144"); A("  s_add_u32 s7, s7, s12")
    A(f"  buffer_store_dwordx2 v[{T}:{T+1}], v1, {OUT}, s7 offen")
    A("L_fin:")
    if stamps:
        A("  s_mov_b64 exec, 1")
        A("  s_memrealtime s[12:13]")
        A("  s_waitcnt lgkmcnt(0) vmcnt(0)")
        A("  s_and_b32 s7, s3, 3"); A("  s_cmp_lg_u32 s7, 0"); A("  s_cbranch_scc1 L_end")
        A("  s_lshl_b32 s7, s2, 8"); A("  s_add_u32 s7, s7, 0x20000000")
        A("  s_lshl_b32 s10, s3, 5"); A("  s_add_u32 s7, s7, s10")
        A("  v_mov_b32 v1, 0")
        A("  v_mov_b32 v4, s98"); A("  v_mov_b32 v5, s99"); A("  v_mov_b32 v6, s12"); A("  v_mov_b32 v7, s13")
        A(f"  buffer_store_dwordx4 v[4:7], v1, {WS}, s7 offen")
        A("  s_getreg_b32 s13, hwreg(HW_REG_XCC_ID)")
        A("  v_mov_b32 v8, s13"); A("  v_mov_b32 v9, 0"); A("  v_mov_b32 v10, s100"); A("  v_mov_b32 v11, s101")
        A(f"  buffer_store_dwordx4 v[8:11], v1, {WS}, s7 offen offset:16")
        A("  s_cmp_lg_u32 s3, 0"); A("  s_cbranch_scc1 L_sth")
        for i, r in enumerate(STR):
            A(f"  v_mov_b32 v12, s{r}"); A(f"  v_mov_b32 v13, s{r+1}")
            A(f"  buffer_store_dwordx2 v[12:13], v1, {WS}, s7 offen offset:{32+8*i}")
            A("  s_nop 1")
        A("  s_branch L_end")
        A("L_sth:")
        for i, r in enumerate(STH[:3]):
            A(f"  v_mov_b32 v12, s{r}"); A(f"  v_mov_b32 v13, s{r+1}")
            A(f"  buffer_store_dwordx2 v[12:13], v1, {WS}, s7 offen offset:{32+8*i}")
            A("  s_nop 1")
    A("L_end:")
    A("  s_endpgm")
    A('.section .rodata,"a"'); A(".p2align 6"); A(f".amdhsa_kernel {KN}")
    A("  .amdhsa_next_free_vgpr 256"); A("  .amdhsa_next_free_sgpr 102"); A("  .amdhsa_accum_offset 256")
    A("  .amdhsa_group_segment_fixed_size 0"); A("  .amdhsa_kernarg_size 112"); A("  .amdhsa_user_sgpr_count 2")
    A("  .amdhsa_user_sgpr_kernarg_segment_ptr 1"); A("  .amdhsa_system_sgpr_workgroup_id_x 1"); A(".end_amdhsa_kernel")
    return A.fix()

if __name__ == "__main__":
    import argparse
    ap = argparse.ArgumentParser()
    ap.add_argument("-o", default="k.s")
    ap.add_argument("--R", type=int, default=5)
    ap.add_argument("--stamps", action="store_true")
    ap.add_argument("--dbg", action="store_true")
    ap.add_argument("--wflags", default="nt")
    ap.add_argument("--npre", type=int, default=32)
    ap.add_argument("--kflags", default="nt")
    ap.add_argument("--vflags", default=None)
    a = ap.parse_args()
    open(a.o, "w").write(gen(R=a.R, stamps=a.stamps, dbg=a.dbg, wflags=a.wflags, NPRE=a.npre, kvflags=a.kflags, vflags=a.vflags))
    print("wrote", a.o)
```

```python
import sys, math, struct
from asmlib import Asm

KN = "gated_mix__mha_block_cached__mixer_channel_mlp__decode_kernel"
HEADER = open("gated_mix__mha_block_cached__mixer_channel_mlp__decode.s.ref").read().split("; Override launch")[0]
f2u = lambda x: "0x%08x" % struct.unpack("<I", struct.pack("<f", x))[0]

QP   = 0
OP   = 2048
SC   = 4096
ML   = SC + 16384
GATE = ML + 32
HCNT = GATE + 4
LAST = GATE + 8
YL   = ML + 64
HP   = YL + 2560
OUTP = HP + 6912
LDS_TOTAL = OUTP + 9216

def gen(R=5, kvflags="nt", vflags=None, wflags="nt", stamps=False, dbg=False, atom_flags="sc0 sc1", NPRE=32, HRW=8, H2=6, dstamps=False, RV=None, RVsel=None, rot=True, skipmlp=False, skipq=False):
    A = Asm()
    S = 16
    if dstamps: stamps = True
    if vflags is None: vflags = kvflags
    STR = [56, 58, 60, 62, 64, 66]
    STH = [44, 46, 56, 58, 8]
    def stamp(regs, i):
        if stamps:
            A(f"  s_memrealtime s[{regs[i]}:{regs[i]+1}]"); A("  s_waitcnt lgkmcnt(0)")
    A(HEADER.rstrip())
    A(f"; @launch grid=(256,1,1) block=(512,1,1) lds={LDS_TOTAL}")
    A('.amdgcn_target "amdgcn-amd-amdhsa--gfx950"')
    A(".text"); A(f".globl {KN}"); A(".p2align 8"); A(f".type {KN},@function"); A(f"{KN}:")
    KV = "s[44:47]"; WQ = "s[48:51]"; XA = "s[52:55]"; GW = "s[60:63]"; W1 = "s[64:67]"
    B1 = "s[68:71]"; W2 = "s[72:75]"; WO = "s[76:79]"; B2 = "s[80:83]"; WS = "s[84:87]"; OUT = "s[88:91]"
    sMASK = "s92"; sM2 = "s[94:95]"; sM1 = "s[96:97]"
    ACC = 8
    T = 16
    RING = 24
    PRE = 88
    SCR = 216
    Q = 232
    vP, vPn, vSC, vRG = "v236", "v237", "v238", "v239"
    AV = 240
    WT = 24
    HRING = 168
    HS = 200
    OA = 216
    HX = 232
    vG_, v1mG, vZ = "v246", "v247", "v248"
    PL = 168
    ring = lambda s: f"v[{RING+4*(s%S)}:{RING+4*(s%S)+3}]"
    pre = lambda t: f"v[{PRE+4*t}:{PRE+4*t+3}]"
    wt = lambda i: f"v[{WT+4*i}:{WT+4*i+3}]"
    def ktile(t):
        return pre(t) if t < NPRE else ring(t)

    A("  s_cmp_ge_u32 s2, 256")
    A("  s_cbranch_scc1 L_end")
    A("  s_load_dwordx16 s[16:31], s[0:1], 0")
    A("  s_load_dwordx8 s[32:39], s[0:1], 64")
    A("  s_load_dwordx4 s[40:43], s[0:1], 96")
    if stamps: A("  s_memrealtime s[98:99]")
    A("  v_lshrrev_b32 v1, 6, v0")
    A("  v_and_b32 v0, 63, v0")
    A("  v_lshlrev_b32 v2, 4, v0")
    A("  v_readfirstlane_b32 s3, v1")
    A("  s_and_b32 s4, s2, 7")
    A("  s_lshl_b32 s4, s4, 2")
    A("  s_bfe_u32 s7, s2, 0x20003")
    A("  s_or_b32 s4, s4, s7")
    A("  s_lshr_b32 s5, s2, 5")
    A("  s_lshl_b32 s6, s5, 5")
    A("  s_or_b32 s6, s6, s4")
    A("  s_lshl_b32 s9, s6, 20")
    A("  s_lshl_b32 s13, s3, 10")
    A("  s_mov_b32 s46, 0x100000"); A("  s_mov_b32 s47, 0x20000")
    A("  v_lshrrev_b32 v3, 4, v0")
    A("  v_and_b32 v4, 15, v0")
    A("  s_mov_b32 s92, 0xffff0000")
    A("  s_mov_b32 s8, s13")
    A("  s_cmp_ge_u32 s3, 4")
    A("  s_cbranch_scc1 L_helper")
    A("  s_waitcnt lgkmcnt(0)")
    A("  s_add_u32 s44, s18, s9"); A("  s_addc_u32 s45, s19, 0")
    for t in range(R):
        A(f"  buffer_load_dwordx4 {ktile(t)}, v2, {KV}, s8 offen {kvflags}")
        A("  s_addk_i32 s8, 4096")
    A("  s_add_u32 s14, s20, s9"); A("  s_addc_u32 s15, s21, 0")
    A("  v_and_b32 v1, 2, v0"); A(f"  v_cmp_ne_u32 {sM2}, 0, v1")
    A("  v_and_b32 v1, 1, v0"); A(f"  v_cmp_ne_u32 {sM1}, 0, v1")
    A("  v_lshlrev_b32 v5, 5, v4"); A("  v_lshl_add_u32 v5, v3, 3, v5")
    A("  s_lshl_b32 s7, s3, 9"); A(f"  v_add_u32 {vRG}, s7, v5")
    A("  s_lshl_b32 s7, s3, 12"); A(f"  v_lshl_add_u32 {vSC}, v0, 2, s7")
    for k in range(8): A(f"  v_mov_b32 v{AV+k}, 0")
    for t in range(NPRE):
        A(f"  s_waitcnt vmcnt({R-1})")
        A(f"  buffer_load_dwordx4 {ktile(t+R)}, v2, {KV}, s8 offen {kvflags}")
        A("  s_addk_i32 s8, 4096")
    stamp(STR, 4)
    A("  s_barrier")
    A("  v_lshlrev_b32 v5, 5, v4")
    QT = SCR
    for w in range(2):
        A(f"  ds_read_b128 v[{SCR+8*w}:{SCR+8*w+3}], v5 offset:{QP+512*w}")
        A(f"  ds_read_b128 v[{SCR+8*w+4}:{SCR+8*w+7}], v5 offset:{QP+512*w+16}")
    A(f"  ds_read_b128 v[{ACC}:{ACC+3}], v5 offset:{QP+1024}")
    A(f"  ds_read_b128 v[{ACC+4}:{ACC+7}], v5 offset:{QP+1024+16}")
    A(f"  ds_read_b128 v[{T}:{T+3}], v5 offset:{QP+1536}")
    A(f"  ds_read_b128 v[{T+4}:{T+7}], v5 offset:{QP+1536+16}")
    A("  s_waitcnt lgkmcnt(0)")
    for k in range(8):
        A(f"  v_add_f32 v{SCR+k}, v{SCR+k}, v{SCR+8+k}")
        A(f"  v_add_f32 v{ACC+k}, v{ACC+k}, v{T+k}")
    for k in range(8): A(f"  v_add_f32 v{SCR+k}, v{SCR+k}, v{ACC+k}")
    for k in range(4): A(f"  v_cvt_pk_bf16_f32 v{Q+k}, v{SCR+2*k}, v{SCR+2*k+1}")
    if dbg:
        A("  s_cmp_lg_u32 s3, 0"); A("  s_cbranch_scc1 L_dq")
        A("  s_mov_b32 s84, s42"); A("  s_mov_b32 s85, s43"); A("  s_mov_b32 s86, 0x40000000"); A("  s_mov_b32 s87, 0x20000")
        A("  s_lshl_b32 s7, s6, 8"); A("  s_add_u32 s7, s7, 0x30000000")
        A("  v_lshlrev_b32 v1, 4, v4")
        A(f"  buffer_store_dwordx4 v[{Q}:{Q+3}], v1, {WS}, s7 offen")
        A("  s_waitcnt vmcnt(0)")
        A("L_dq:")
    stamp(STR, 0)
    a = lambda i: f"v{SCR+i}"
    def kdots(u, r):
        for k in range(4):
            c = "0" if k == 0 else a(u)
            A(f"  v_dot2_f32_bf16 {a(u)}, v{r+k}, v{Q+k}, {c}")
    def kreduce():
        for i in range(8):
            A(f"  v_add_f32_dpp {a(i)}, {a(i)}, {a(i)} row_ror:8 row_mask:0xf bank_mask:0x3")
            A(f"  v_add_f32_dpp {a(i)}, {a(i+8)}, {a(i+8)} row_ror:8 row_mask:0xf bank_mask:0xc")
        for i in range(4):
            A(f"  v_add_f32_dpp {a(i)}, {a(i)}, {a(i)} row_shl:4 row_mask:0xf bank_mask:0x5")
            A(f"  v_add_f32_dpp {a(i)}, {a(i+4)}, {a(i+4)} row_shr:4 row_mask:0xf bank_mask:0xa")
        for i in range(2):
            A(f"  v_cndmask_b32 v{T+i}, {a(i)}, {a(i+2)}, {sM2}")
            A(f"  v_cndmask_b32 v{T+2+i}, {a(i+2)}, {a(i)}, {sM2}")
        for i in range(2):
            A(f"  v_add_f32_dpp v{T+i}, v{T+2+i}, v{T+i} quad_perm:[2,3,0,1] row_mask:0xf bank_mask:0xf")
        A(f"  v_cndmask_b32 v{T+4}, v{T}, v{T+1}, {sM1}")
        A(f"  v_cndmask_b32 v{T+5}, v{T+1}, v{T}, {sM1}")
        A(f"  v_add_f32_dpp v{T+4}, v{T+5}, v{T+4} quad_perm:[1,0,3,2] row_mask:0xf bank_mask:0xf")
        A(f"  ds_write_b32 {vSC}, v{T+4} offset:{SC}")
        A(f"  v_add_u32 {vSC}, 256, {vSC}")
    for blk in range(NPRE // 16):
        for u in range(16): kdots(u, PRE + 4 * (16 * blk + u))
        kreduce()
    A(f"  s_mov_b32 s12, {NPRE//16}")
    A("L_kloop:")
    if stamps:
        A("  s_cmp_lg_u32 s12, 9"); A("  s_cbranch_scc1 L_nomid")
        A(f"  s_memrealtime s[{STR[5]}:{STR[5]+1}]"); A("  s_waitcnt lgkmcnt(0)")
        A("L_nomid:")
    for u in range(16):
        A(f"  s_waitcnt vmcnt({R-1})")
        if u + R == 16:
            A("  s_cmp_eq_u32 s12, 15")
            A("  s_cselect_b32 s44, s14, s44"); A("  s_cselect_b32 s45, s15, s45"); A("  s_cselect_b32 s8, s13, s8")
        A(f"  buffer_load_dwordx4 {ring(u+R)}, v2, {KV}, s8 offen {kvflags}")
        A("  s_addk_i32 s8, 4096")
        kdots(u, RING + 4 * (u % S))
    kreduce()
    A("  s_add_u32 s12, s12, 1")
    A("  s_cmp_lt_u32 s12, 16")
    A("  s_cbranch_scc1 L_kloop")
    stamp(STR, 1)
    A(f"  v_subrev_u32 {vSC}, 4096, {vSC}")
    A("  s_waitcnt lgkmcnt(0)")
    for i in range(16): A(f"  ds_read_b32 {a(i)}, {vSC} offset:{SC+256*i}")
    A("  s_waitcnt lgkmcnt(0)")
    if dbg:
        A("  s_mov_b32 s84, s42"); A("  s_mov_b32 s85, s43"); A("  s_mov_b32 s86, 0x40000000"); A("  s_mov_b32 s87, 0x20000")
        A("  s_lshl_b32 s7, s6, 2"); A("  s_add_u32 s7, s7, s3"); A("  s_lshl_b32 s7, s7, 12"); A("  s_add_u32 s7, s7, 0x31000000")
        A("  v_lshlrev_b32 v1, 2, v0")
        for i in range(16): A(f"  buffer_store_dword {a(i)}, v1, {WS}, s7 offen offset:{256*i}")
        A("  s_waitcnt vmcnt(0)")
    t0, t1 = f"v{T}", f"v{T+1}"
    A(f"  v_max3_f32 {t0}, {a(0)}, {a(1)}, {a(2)}")
    for i in range(3, 15, 2): A(f"  v_max3_f32 {t0}, {t0}, {a(i)}, {a(i+1)}")
    A(f"  v_max_f32 {t0}, {t0}, {a(15)}")
    def allreduce(op, v, tmp):
        for sh in (8, 4, 2, 1):
            A(f"  {op}_dpp {v}, {v}, {v} row_ror:{sh} row_mask:0xf bank_mask:0xf")
        A(f"  v_mov_b32 {tmp}, {v}"); A(f"  v_permlane16_swap_b32 {v}, {tmp}"); A(f"  {op} {v}, {v}, {tmp}")
        A(f"  v_mov_b32 {tmp}, {v}"); A(f"  v_permlane32_swap_b32 {v}, {tmp}"); A(f"  {op} {v}, {v}, {tmp}")
    allreduce("v_max_f32", t0, t1)
    SC2 = (128 ** -0.5) * math.log2(math.e)
    A(f"  s_mov_b32 s7, {f2u(SC2)}")
    A(f"  v_mul_f32 {t0}, s7, {t0}")
    for i in range(16): A(f"  v_fma_f32 {a(i)}, {a(i)}, s7, -{t0}")
    for i in range(16): A(f"  v_exp_f32 {a(i)}, {a(i)}")
    for i in range(16): A(f"  ds_write_b32 {vSC}, {a(i)} offset:{SC+256*i}")
    A(f"  v_mov_b32 {vP}, {a(0)}")
    A(f"  v_add_f32 v{T+2}, {a(0)}, {a(1)}")
    for i in range(2, 16): A(f"  v_add_f32 v{T+2}, v{T+2}, {a(i)}")
    allreduce("v_add_f32", f"v{T+2}", f"v{T+3}")
    A(f"  v_mov_b32 v{T+1}, v{T+2}")
    A("  s_lshl_b32 s7, s3, 3")
    A(f"  v_mov_b32 v1, s7")
    A(f"  ds_write_b64 v1, v[{T}:{T+1}] offset:{ML}")
    A("  s_mov_b32 s12, 0")
    stamp(STR, 2)
    def unpack(r):
        for k in range(4):
            A(f"  v_lshlrev_b32 v{T+2*k}, 16, v{r+k}")
            A(f"  v_and_b32 v{T+2*k+1}, {sMASK}, v{r+k}")
    def vloop(RVx, lab):
        for t in range(R, RVx):
            A(f"  buffer_load_dwordx4 {ring(t)}, v2, {KV}, s8 offen {vflags}")
            A("  s_addk_i32 s8, 4096")
        A(f"{lab}:")
        A(f"  v_add_u32 {vSC}, 256, {vSC}")
        A(f"  ds_read_b32 {vPn}, {vSC} offset:{SC}")
        for u in range(16):
            A(f"  s_waitcnt vmcnt({RVx-1})")
            A(f"  buffer_load_dwordx4 {ring(u+RVx)}, v2, {KV}, s8 offen {vflags}")
            A("  s_addk_i32 s8, 4096")
            unpack(RING + 4 * (u % S))
            for k in range(8):
                A(f"  v_fmac_f32_dpp v{AV+k}, {vP}, v{T+k} row_newbcast:{u} row_mask:0xf bank_mask:0xf")
        A("  s_waitcnt lgkmcnt(0)")
        A(f"  v_mov_b32 {vP}, {vPn}")
        A("  s_add_u32 s12, s12, 1")
        A("  s_cmp_lt_u32 s12, 16")
        A(f"  s_cbranch_scc1 {lab}")
    if RV is None: RV = R
    if RVsel is None:
        vloop(RV, "L_vloop")
    else:
        A("  s_cmp_lt_u32 s5, 4")
        A(f"  s_cbranch_scc{1 if RVsel == 'hi' else 0} L_vB")
        vloop(RV, "L_vloopA")
        A("  s_branch L_vdone")
        A("L_vB:")
        vloop(R, "L_vloopB")
        A("L_vdone:")
    stamp(STR, 3)
    def reduce_g(a_):
        for j in range(4): A(f"  v_permlane32_swap_b32 v{a_+j}, v{a_+j+4}")
        for j in range(4): A(f"  v_add_f32 v{a_+j}, v{a_+j}, v{a_+j+4}")
        for j in range(2): A(f"  v_permlane16_swap_b32 v{a_+j}, v{a_+j+2}")
        for j in range(2): A(f"  v_add_f32 v{a_+j}, v{a_+j}, v{a_+j+2}")
    reduce_g(AV)
    A(f"  ds_write_b64 {vRG}, v[{AV}:{AV+1}] offset:{OP}")
    A("  s_waitcnt lgkmcnt(0)")
    A("  s_barrier")
    A("  s_barrier")
    A("  s_branch L_final")

    A("L_helper:")
    A("  s_sub_u32 s12, s3, 4")
    A("  s_mul_i32 s7, s5, 1152")
    A("  s_mul_i32 s14, s5, 9"); A("  s_lshr_b32 s14, s14, 1")
    if not rot: A("  s_mov_b32 s14, 0")
    for k in range(3):
        A(f"  s_add_u32 s15, s14, {16*k}")
        A(f"  v_add_u32 v{6+k}, s15, v4")
        A(f"  v_subrev_u32 v5, 36, v{6+k}")
        A(f"  v_min_u32 v{6+k}, v{6+k}, v5")
        A(f"  v_lshlrev_b32 v{6+k}, 3, v{6+k}")
        A(f"  v_lshl_add_u32 v{6+k}, v3, 1, v{6+k}")
    A("  v_lshlrev_b32 v1, 4, v4"); A("  v_lshl_add_u32 v1, v3, 13, v1")
    A(f"  s_mul_i32 s10, s12, {144*8192}"); A("  s_lshl_b32 s11, s4, 8"); A("  s_add_u32 s10, s10, s11")
    A(f"  s_add_u32 s15, s10, {36*32768}")
    A("  s_mov_b32 s9, s10")
    A("  s_lshl_b32 s14, s14, 15"); A("  s_add_u32 s10, s10, s14")
    A("  s_mul_i32 s11, s12, 288")
    A(f"  s_mov_b32 s50, {576*8192}"); A("  s_mov_b32 s51, 0x20000")
    A("  s_mov_b32 s54, 1152"); A("  s_mov_b32 s55, 0x20000")
    A("  s_waitcnt lgkmcnt(0)")
    A("  s_add_u32 s52, s16, s7"); A("  s_addc_u32 s53, s17, 0")
    A("  s_mov_b32 s48, s22"); A("  s_mov_b32 s49, s23")
    for k in range(3):
        A(f"  buffer_load_ushort v{6+k}, v{6+k}, {XA}, s11 offen")
    for i in range(36):
        A(f"  buffer_load_dwordx4 {wt(i)}, v1, {WQ}, s10 offen {wflags}")
        if i < 35:
            A("  s_add_u32 s10, s10, 32768")
            A("  s_cmp_eq_u32 s10, s15"); A("  s_cselect_b32 s10, s9, s10")
    A("  s_mov_b32 s60, s36"); A("  s_mov_b32 s61, s37"); A("  s_mov_b32 s62, 1152"); A("  s_mov_b32 s63, 0x20000")
    A("  s_mov_b32 s68, s30"); A("  s_mov_b32 s69, s31"); A("  s_mov_b32 s70, 9216"); A("  s_mov_b32 s71, 0x20000")
    A("  s_mov_b32 s80, s34"); A("  s_mov_b32 s81, s35"); A("  s_mov_b32 s82, 1152"); A("  s_mov_b32 s83, 0x20000")
    A("  v_lshlrev_b32 v1, 2, v0")
    for k in range(5): A(f"  buffer_load_dword v{HX+k}, v1, {XA}, 0 offen offset:{256*k}")
    for k in range(5): A(f"  buffer_load_dword v{HX+5+k}, v1, {GW}, 0 offen offset:{256*k}")
    A("  s_mul_i32 s10, s4, 288"); A("  s_mul_i32 s11, s12, 72"); A("  s_add_u32 s10, s10, s11")
    A("  v_lshlrev_b32 v1, 1, v0")
    A(f"  buffer_load_ushort v{HX+10}, v1, {B1}, s10 offen")
    NYOUNG = 11
    A("  s_mov_b32 s76, s24"); A("  s_mov_b32 s77, s25"); A(f"  s_mov_b32 s78, {4096*1152}"); A("  s_mov_b32 s79, 0x20000")
    for k in range(16): A(f"  v_mov_b32 v{OA+k}, 0")
    A(f"  s_waitcnt vmcnt({36+NYOUNG})")
    for k in range(3): A(f"  v_lshlrev_b32 v{6+k}, 16, v{6+k}")
    QA = HS
    for i in range(36):
        A(f"  s_waitcnt vmcnt({35-i+NYOUNG})")
        unpack(WT + 4 * i)
        src = f"v{6 + i // 16}"
        for k in range(8):
            op = "v_mul_f32_dpp" if i == 0 else "v_fmac_f32_dpp"
            A(f"  {op} v{QA+k}, {src}, v{T+k} row_newbcast:{i%16} row_mask:0xf bank_mask:0xf")
    reduce_g(QA)
    A("  v_lshlrev_b32 v5, 5, v4"); A("  v_lshl_add_u32 v5, v3, 3, v5")
    A("  s_lshl_b32 s7, s12, 9"); A("  v_add_u32 v5, s7, v5")
    A(f"  ds_write_b64 v5, v[{QA}:{QA+1}] offset:{QP}")
    A("  v_mov_b32 v1, 0"); A(f"  v_mov_b32 v5, {HCNT}")
    A("  ds_write_b32 v5, v1")
    A("  s_waitcnt lgkmcnt(0)")
    A("  s_barrier")
    stamp(STH, 2)
    X = HS
    A("  s_waitcnt vmcnt(0)")
    for k in range(5):
        A(f"  v_lshlrev_b32 v{X+2*k}, 16, v{HX+k}")
        A(f"  v_and_b32 v{X+2*k+1}, {sMASK}, v{HX+k}")
    A(f"  v_add_f32 {t0}, v{X}, v{X+1}")
    for k in range(2, 10): A(f"  v_add_f32 {t0}, {t0}, v{X+k}")
    allreduce("v_add_f32", t0, t1)
    A(f"  v_mul_f32 {t0}, {f2u(1.0/576)}, {t0}")
    for k in range(10): A(f"  v_sub_f32 v{X+k}, v{X+k}, {t0}")
    A("  v_cmp_gt_u32 vcc, 32, v0")
    A(f"  v_cndmask_b32 v{X+8}, 0, v{X+8}, vcc"); A(f"  v_cndmask_b32 v{X+9}, 0, v{X+9}, vcc")
    A(f"  v_mul_f32 {t0}, v{X}, v{X}")
    for k in range(1, 10): A(f"  v_fmac_f32 {t0}, v{X+k}, v{X+k}")
    allreduce("v_add_f32", t0, t1)
    A(f"  v_mov_b32 {t1}, {f2u(1e-5)}")
    A(f"  v_fmac_f32 {t1}, {f2u(1.0/576)}, {t0}")
    A(f"  v_rsq_f32 {t1}, {t1}")
    for k in range(10): A(f"  v_mul_f32 v{X+k}, v{X+k}, {t1}")
    A("  v_lshlrev_b32 v1, 3, v0")
    for k in range(5): A(f"  ds_write_b64 v1, v[{X+2*k}:{X+2*k+1}] offset:{YL+512*k}")
    A(f"  v_dot2_f32_bf16 {t0}, v{HX}, v{HX+5}, 0")
    for k in range(1, 5): A(f"  v_dot2_f32_bf16 {t0}, v{HX+k}, v{HX+5+k}, {t0}")
    allreduce("v_add_f32", t0, t1)
    A(f"  v_mul_f32 {t0}, {f2u(-math.log2(math.e))}, {t0}")
    A(f"  v_exp_f32 {t0}, {t0}")
    A(f"  v_add_f32 {t0}, 1.0, {t0}")
    A(f"  v_rcp_f32 {vG_}, {t0}")
    A(f"  v_sub_f32 {v1mG}, 1.0, {vG_}")
    A(f"  v_mov_b32 v1, {GATE}")
    A(f"  ds_write_b32 v1, {vG_}")
    if skipmlp: A("  s_branch L_skipmlp")
    A("  v_mul_u32_u24 v5, 57, v0"); A("  v_lshrrev_b32 v5, 10, v5")
    A("  v_mul_u32_u24 v6, 18, v5"); A("  v_sub_u32 v6, v0, v6")
    A("  v_mul_u32_u24 v7, 9216, v5"); A("  v_lshl_add_u32 v7, v6, 4, v7")
    A("  s_mov_b32 s64, s28"); A("  s_mov_b32 s65, s29"); A(f"  s_mov_b32 s66, {576*9216}"); A("  s_mov_b32 s67, 0x20000")
    NIT = 48 // HRW
    A(f"  s_mul_i32 s9, s12, {144*9216}"); A("  s_mul_i32 s11, s4, 288"); A("  s_add_u32 s9, s9, s11")
    A("  s_mul_i32 s11, s12, 576")
    A("  v_lshl_add_u32 v1, v5, 2, s11")
    A(f"  s_cmp_ge_u32 s5, {NIT}"); A(f"  s_cselect_b32 s14, {NIT}, 0"); A("  s_sub_u32 s14, s5, s14")
    if not rot: A("  s_mov_b32 s14, 0")
    A(f"  s_mul_i32 s10, s14, {HRW*27648}"); A("  s_add_u32 s10, s10, s9")
    hring = lambda s: f"v[{HRING+4*s}:{HRING+4*s+3}]"
    for u in range(HRW):
        A(f"  buffer_load_dwordx4 {hring(u)}, v7, {W1}, s10 offen {wflags}")
        A("  s_add_u32 s10, s10, 27648")
    for k in range(8): A(f"  v_mov_b32 v{ACC+k}, 0")
    A("  s_mov_b32 s11, 0")
    A("  s_waitcnt lgkmcnt(0)")
    A("L_w1:")
    A(f"  s_mul_i32 s15, s14, {12*HRW}")
    A("  v_add_u32 v250, s15, v1")
    for u in range(HRW): A(f"  ds_read_b32 v{HS+u}, v250 offset:{YL+12*u}")
    A("  s_add_u32 s14, s14, 1"); A(f"  s_cmp_eq_u32 s14, {NIT}"); A("  s_cselect_b32 s14, 0, s14")
    A(f"  s_mul_i32 s10, s14, {HRW*27648}"); A("  s_add_u32 s10, s10, s9")
    A(f"  s_cmp_eq_u32 s11, {NIT-1}")
    A("  s_cselect_b32 s10, 0x40000000, s10")
    A("  s_waitcnt lgkmcnt(0)")
    for u in range(HRW):
        A(f"  s_waitcnt vmcnt({HRW-1})")
        unpack(HRING + 4 * u)
        A(f"  buffer_load_dwordx4 {hring(u)}, v7, {W1}, s10 offen {wflags}")
        A("  s_add_u32 s10, s10, 27648")
        for k in range(8): A(f"  v_fmac_f32 v{ACC+k}, v{HS+u}, v{T+k}")
    A("  s_add_u32 s11, s11, 1")
    A(f"  s_cmp_lt_u32 s11, {NIT}")
    A("  s_cbranch_scc1 L_w1")
    stamp(STH, 0)
    A("  s_mul_i32 s11, s12, 3")
    A("  v_add_u32 v1, s11, v5"); A("  v_mul_u32_u24 v1, 576, v1"); A("  v_lshl_add_u32 v1, v6, 5, v1")
    A("  v_cmp_gt_u32 vcc, 54, v0")
    A("  s_and_saveexec_b64 s[10:11], vcc")
    A(f"  ds_write_b128 v1, v[{ACC}:{ACC+3}] offset:{HP}")
    A(f"  ds_write_b128 v1, v[{ACC+4}:{ACC+7}] offset:{HP+16}")
    A("  s_mov_b64 exec, 1")
    A(f"  v_mov_b32 v1, {HCNT}"); A("  v_mov_b32 v5, 1")
    A("  ds_add_u32 v1, v5")
    A("  s_mov_b64 exec, -1")
    A(f"  v_mov_b32 v1, {HCNT}")
    A("L_hspin:")
    A("  ds_read_b32 v5, v1")
    A("  s_waitcnt lgkmcnt(0)")
    A("  v_readfirstlane_b32 s10, v5")
    A("  s_cmp_ge_u32 s10, 4")
    A("  s_cbranch_scc1 L_hgo")
    A("  s_sleep 4")
    A("  s_branch L_hspin")
    A("L_hgo:")
    A("  s_mul_i32 s11, s12, 144")
    A("  v_min_u32 v1, 35, v0")
    A("  v_lshl_add_u32 v1, v1, 2, s11")
    for k in range(12): A(f"  ds_read_b32 v{HS+k}, v1 offset:{HP+576*k}")
    A(f"  v_lshlrev_b32 {t0}, 16, v{HX+10}")
    A("  s_waitcnt lgkmcnt(0)")
    for k in range(12): A(f"  v_add_f32 {t0}, {t0}, v{HS+k}")
    k0 = math.sqrt(2 / math.pi)
    A(f"  v_mul_f32 {t1}, {t0}, {t0}")
    A(f"  v_mov_b32 v{T+2}, {f2u(-2*k0*math.log2(math.e))}")
    A(f"  v_fmac_f32 v{T+2}, {f2u(-2*k0*0.044715*math.log2(math.e))}, {t1}")
    A(f"  v_mul_f32 v{T+2}, v{T+2}, {t0}")
    A(f"  v_exp_f32 v{T+2}, v{T+2}")
    A(f"  v_add_f32 v{T+2}, 1.0, v{T+2}")
    A(f"  v_rcp_f32 v{T+2}, v{T+2}")
    A(f"  v_mul_f32 {t0}, {t0}, v{T+2}")
    A(f"  v_mul_f32 {t0}, {v1mG}, {t0}")
    A("  v_cmp_gt_u32 vcc, 36, v0")
    A(f"  v_cndmask_b32 {vZ}, 0, {t0}, vcc")
    A("  s_mov_b32 s84, s42"); A("  s_mov_b32 s85, s43"); A("  s_mov_b32 s86, 0x40000000"); A("  s_mov_b32 s87, 0x20000")
    if dbg:
        A("  s_lshl_b32 s7, s6, 2"); A("  s_add_u32 s7, s7, s12"); A("  s_lshl_b32 s7, s7, 8"); A("  s_add_u32 s7, s7, 0x32000000")
        A("  v_lshlrev_b32 v1, 2, v0")
        A(f"  buffer_store_dword {vZ}, v1, {WS}, s7 offen")
        A("  s_waitcnt vmcnt(0)")
    A("  s_mul_i32 s10, s4, 144"); A("  s_mul_i32 s11, s12, 36"); A("  s_add_u32 s10, s10, s11"); A("  s_mul_i32 s10, s10, 1152")
    A("  s_add_u32 s72, s32, s10"); A("  s_addc_u32 s73, s33, 0"); A(f"  s_mov_b32 s74, {36*1152}"); A("  s_mov_b32 s75, 0x20000")
    NI2 = 36 // H2
    A(f"  s_cmp_ge_u32 s5, {NI2}"); A(f"  s_cselect_b32 s14, {NI2}, 0"); A("  s_sub_u32 s14, s5, s14")
    if not rot: A("  s_mov_b32 s14, 0")
    A(f"  s_mul_i32 s10, s14, {H2*1152}")
    for u in range(H2):
        A(f"  buffer_load_dwordx4 {hring(u)}, v2, {W2}, s10 offen {wflags}")
        A("  s_addk_i32 s10, 1152")
    A("  s_mov_b32 s9, 0")
    A("L_w2:")
    A(f"  s_mul_i32 s11, s14, {H2}")
    A("  s_add_u32 s14, s14, 1"); A(f"  s_cmp_eq_u32 s14, {NI2}"); A("  s_cselect_b32 s14, 0, s14")
    A(f"  s_mul_i32 s10, s14, {H2*1152}")
    A(f"  s_cmp_eq_u32 s9, {NI2-1}")
    A("  s_cselect_b32 s10, 0x40000000, s10")
    for u in range(H2):
        A(f"  v_readlane_b32 s7, {vZ}, s11")
        A("  s_add_u32 s11, s11, 1")
        A(f"  s_waitcnt vmcnt({H2-1})")
        unpack(HRING + 4 * u)
        A(f"  buffer_load_dwordx4 {hring(u)}, v2, {W2}, s10 offen {wflags}")
        A("  s_addk_i32 s10, 1152")
        for k in range(8): A(f"  v_fmac_f32 v{OA+k}, s7, v{T+k}")
    A("  s_add_u32 s9, s9, 1")
    A(f"  s_cmp_lt_u32 s9, {NI2}")
    A("  s_cbranch_scc1 L_w2")
    stamp(STH, 1)
    A("  v_lshrrev_b32 v5, 3, v0"); A("  v_mul_u32_u24 v6, 1152, v5")
    A("  v_and_b32 v1, 7, v0"); A("  v_lshl_add_u32 v6, v1, 4, v6")
    A("  s_mov_b32 s10, 0")
    for e in range(5):
        A(f"  buffer_load_dwordx4 {wt(e)}, v6, {W2}, s10 offen offset:1024 {wflags}")
        A(f"  s_addk_i32 s10, {8*1152}")
    A("  v_lshlrev_b32 v5, 2, v5")
    for e in range(5):
        A(f"  ds_bpermute_b32 v{HS+e}, v5, {vZ}")
        A("  v_add_u32 v5, 32, v5")
    A("  s_waitcnt lgkmcnt(0)")
    for e in range(5):
        A(f"  s_waitcnt vmcnt({4-e})")
        unpack(WT + 4 * e)
        for k in range(8): A(f"  v_fmac_f32 v{OA+8+k}, v{HS+e}, v{T+k}")
    A("L_skipmlp:")
    A("  s_mov_b32 s84, s42"); A("  s_mov_b32 s85, s43"); A("  s_mov_b32 s86, 0x40000000"); A("  s_mov_b32 s87, 0x20000")
    A("  s_lshl_b32 s10, s4, 7"); A("  s_lshl_b32 s11, s12, 5"); A("  s_add_u32 s10, s10, s11"); A("  s_mul_i32 s10, s10, 1152")
    A("  v_lshrrev_b32 v5, 3, v0"); A("  v_mul_u32_u24 v5, 2304, v5")
    A("  v_and_b32 v1, 7, v0"); A("  v_lshl_add_u32 v5, v1, 4, v5")
    for e in range(2):
        for par in range(2):
            A(f"  buffer_load_dwordx4 {wt(32+2*e+par)}, v5, {WO}, s10 offen offset:{1024+1152*par} {wflags}")
        if e == 0: A(f"  s_add_u32 s11, s10, {16*1152}"); A("  s_mov_b32 s7, s10"); A("  s_mov_b32 s10, s11")
    A("  s_mov_b32 s10, s7")
    for r in range(32):
        A(f"  buffer_load_dwordx4 {wt(r)}, v2, {WO}, s10 offen {wflags}")
        A("  s_addk_i32 s10, 1152")
    A("  s_mov_b32 s10, 0x05040100"); A("  s_mov_b32 s11, 0x07060302")
    A("  s_waitcnt vmcnt(0)")
    for k in range(18):
        for i in range(4):
            a_, b_ = WT + 8 * k + i, WT + 8 * k + 4 + i
            tmp = T + (i % 4)
            A(f"  v_perm_b32 v{tmp}, v{b_}, v{a_}, s10")
            A(f"  v_perm_b32 v{b_}, v{b_}, v{a_}, s11")
            A(f"  v_mov_b32 v{a_}, v{tmp}")
    A("  s_lshl_b32 s7, s12, 7")
    A("  v_lshlrev_b32 v1, 9, v3"); A("  v_lshl_add_u32 v1, v4, 2, v1"); A("  v_add_u32 v1, s7, v1")
    A("  v_mov_b32 v5, 0")
    A("  v_lshlrev_b32 v6, 3, v3")
    A("  v_lshrrev_b32 v7, 3, v0"); A("  v_lshlrev_b32 v7, 3, v7")
    A("  s_barrier")
    if stamps:
        A("  s_memrealtime s[100:101]"); A("  s_waitcnt lgkmcnt(0)")
    A(f"  ds_read_b32 v{T}, v1 offset:{OP}")
    A(f"  ds_read_b32 v{T+4}, v1 offset:{OP+64}")
    A(f"  ds_read_b128 v[{HS}:{HS+3}], v5 offset:{ML}")
    A(f"  ds_read_b128 v[{HS+4}:{HS+7}], v5 offset:{ML+16}")
    A(f"  ds_read_b32 v{T+1}, v6 offset:{ML}")
    A("  s_waitcnt lgkmcnt(0)")
    m0, l0, m1, l1, m2, l2, m3, l3 = [f"v{HS+i}" for i in range(8)]
    A(f"  v_max3_f32 v{T+2}, {m0}, {m1}, {m2}"); A(f"  v_max_f32 v{T+2}, v{T+2}, {m3}")
    for mm in (m0, m1, m2, m3, f"v{T+1}"): A(f"  v_sub_f32 {mm}, {mm}, v{T+2}")
    for mm in (m0, m1, m2, m3, f"v{T+1}"): A(f"  v_exp_f32 {mm}, {mm}")
    A(f"  v_mul_f32 v{T+3}, {m0}, {l0}")
    A(f"  v_fmac_f32 v{T+3}, {m1}, {l1}"); A(f"  v_fmac_f32 v{T+3}, {m2}, {l2}"); A(f"  v_fmac_f32 v{T+3}, {m3}, {l3}")
    A(f"  v_rcp_f32 v{T+3}, v{T+3}")
    A(f"  v_mul_f32 v{T}, v{T}, v{T+1}"); A(f"  v_mul_f32 v{T+4}, v{T+4}, v{T+1}")
    A(f"  v_mul_f32 v{T+3}, v{T+3}, {vG_}")
    A(f"  v_permlane32_swap_b32 v{T}, v{T+4}")
    A(f"  v_add_f32 v{T}, v{T}, v{T+4}")
    A(f"  v_mov_b32 v{T+1}, v{T}"); A(f"  v_permlane16_swap_b32 v{T}, v{T+1}"); A(f"  v_add_f32 v{T}, v{T}, v{T+1}")
    A(f"  v_mul_f32 v{T}, v{T}, v{T+3}")
    if dbg:
        A("  s_lshl_b32 s7, s6, 2"); A("  s_add_u32 s7, s7, s12"); A("  s_lshl_b32 s7, s7, 8"); A("  s_add_u32 s7, s7, 0x33000000")
        A("  v_lshlrev_b32 v1, 2, v0")
        A(f"  buffer_store_dword v{T}, v1, {WS}, s7 offen")
        A("  s_waitcnt vmcnt(0)")
    A(f"  v_mov_b32_dpp v{T+1}, v{T} quad_perm:[1,0,3,2] row_mask:0xf bank_mask:0xf")
    A(f"  v_cvt_pk_bf16_f32 v{T}, v{T}, v{T+1}")
    A(f"  ds_bpermute_b32 v{T+2}, v7, v{T}")
    A("  v_add_u32 v7, 128, v7")
    A(f"  ds_bpermute_b32 v{T+3}, v7, v{T}")
    ZS = 16
    for k in range(16): A(f"  v_readlane_b32 s{ZS+k}, v{T}, {2*k if k < 8 else 32 + 2*(k-8)}")
    for k in range(16):
        for i in range(4):
            A(f"  v_dot2c_f32_bf16 v{OA+2*i}, s{ZS+k}, v{WT+8*k+i}")
            A(f"  v_dot2c_f32_bf16 v{OA+2*i+1}, s{ZS+k}, v{WT+8*k+4+i}")
    A("  s_waitcnt lgkmcnt(0)")
    for e in range(2):
        for i in range(4):
            A(f"  v_dot2c_f32_bf16 v{OA+8+2*i}, v{T+2+e}, v{WT+128+8*e+i}")
            A(f"  v_dot2c_f32_bf16 v{OA+8+2*i+1}, v{T+2+e}, v{WT+128+8*e+4+i}")
    A("  s_mul_i32 s7, s12, 2304")
    A("  v_lshl_add_u32 v1, v0, 5, s7")
    A(f"  ds_write_b128 v1, v[{OA}:{OA+3}] offset:{OUTP}")
    A(f"  ds_write_b128 v1, v[{OA+4}:{OA+7}] offset:{OUTP+16}")
    E = OA + 8
    for j in range(4): A(f"  v_permlane32_swap_b32 v{E+j}, v{E+j+4}")
    for j in range(4): A(f"  v_add_f32 v{E+j}, v{E+j}, v{E+j+4}")
    for j in range(2): A(f"  v_permlane16_swap_b32 v{E+j}, v{E+j+2}")
    for j in range(2): A(f"  v_add_f32 v{E+j}, v{E+j}, v{E+j+2}")
    A(f"  v_add_f32_dpp v{E}, v{E}, v{E} row_ror:8 row_mask:0xf bank_mask:0x3")
    A(f"  v_add_f32_dpp v{E}, v{E+1}, v{E+1} row_ror:8 row_mask:0xf bank_mask:0xc")
    A("  v_and_b32 v1, 7, v0"); A("  v_lshlrev_b32 v1, 3, v1")
    A("  v_bfe_u32 v5, v0, 3, 1"); A("  v_add_u32 v1, v1, v5"); A("  v_lshl_add_u32 v1, v3, 1, v1")
    A("  v_lshl_add_u32 v1, v1, 2, s7")
    A(f"  ds_write_b32 v1, v{E} offset:{OUTP+2048}")
    A("  s_waitcnt lgkmcnt(0)")
    A("  s_barrier")

    A("L_final:")
    F = 24
    A("  s_mov_b32 s84, s42"); A("  s_mov_b32 s85, s43"); A("  s_mov_b32 s86, 0x40000000"); A("  s_mov_b32 s87, 0x20000")
    A("  s_mul_i32 s7, s3, 288")
    A("  v_lshl_add_u32 v1, v0, 4, s7")
    A("  v_cmp_gt_u32 vcc, 18, v0")
    A("  s_and_saveexec_b64 s[10:11], vcc")
    for w in range(4): A(f"  ds_read_b128 v[{F+4*w}:{F+4*w+3}], v1 offset:{OUTP+2304*w}")
    A("  s_lshl_b32 s7, s5, 3"); A("  s_add_u32 s7, s7, s3")
    A("  s_lshl_b32 s12, s7, 14")
    A("  s_lshl_b32 s13, s4, 9"); A("  s_add_u32 s13, s13, s12")
    A("  s_waitcnt lgkmcnt(0)")
    for k in range(4):
        A(f"  v_add_f32 v{F+k}, v{F+k}, v{F+4+k}"); A(f"  v_add_f32 v{F+8+k}, v{F+8+k}, v{F+12+k}")
    for k in range(4): A(f"  v_add_f32 v{F+k}, v{F+k}, v{F+8+k}")
    A(f"  buffer_store_dwordx4 v[{F}:{F+3}], v2, {WS}, s13 offen sc1")
    A("  s_waitcnt vmcnt(0)")
    A("  s_mov_b64 exec, -1")
    A("  s_barrier")
    A("  s_cmp_lg_u32 s3, 0")
    A("  s_cbranch_scc1 L_wait6")
    A("  s_mov_b64 exec, 1")
    A("  s_lshl_b32 s7, s5, 5")
    A("  v_mov_b32 v5, s7"); A("  v_mov_b32 v6, 1")
    A(f"  global_atomic_add v7, v5, v6, s[40:41] {atom_flags}")
    A(f"  v_mov_b32 v5, {LAST}")
    A("  s_waitcnt vmcnt(0)")
    A("  ds_write_b32 v5, v7")
    A("  s_waitcnt lgkmcnt(0)")
    A("  s_mov_b64 exec, -1")
    A("L_wait6:")
    A("  s_barrier")
    A(f"  v_mov_b32 v5, {LAST}")
    A("  ds_read_b32 v7, v5")
    A(f"  ds_read_b32 v8, v5 offset:{GATE-LAST}" if GATE >= LAST else f"  v_mov_b32 v5, {GATE}\n  ds_read_b32 v8, v5\n")
    A("  s_waitcnt lgkmcnt(0)")
    A("  v_readfirstlane_b32 s7, v7")
    A("  s_cmp_lg_u32 s7, 31")
    A("  s_cbranch_scc1 L_fin")
    A("  s_mov_b64 exec, 0x3ffff")
    G = 24
    for hh in range(32):
        if hh % 8 == 0 and hh: A("  s_add_u32 s12, s12, 4096")
        A(f"  buffer_load_dwordx4 v[{G+4*hh}:{G+4*hh+3}], v2, {WS}, s12 offen offset:{512*(hh%8)} sc1")
    A("  s_mov_b32 s80, s34"); A("  s_mov_b32 s81, s35"); A("  s_mov_b32 s82, 1152"); A("  s_mov_b32 s83, 0x20000")
    A("  s_mul_i32 s11, s3, 144")
    A("  v_lshlrev_b32 v1, 3, v0")
    A(f"  buffer_load_dwordx2 v[10:11], v1, {B2}, s11 offen")
    A("  s_mov_b32 s88, s38"); A("  s_mov_b32 s89, s39"); A("  s_mov_b32 s90, 9216"); A("  s_mov_b32 s91, 0x20000")
    A(f"  v_sub_f32 v8, 1.0, v8")
    for hh in range(1, 32):
        A(f"  s_waitcnt vmcnt({32-hh})")
        for k in range(4): A(f"  v_add_f32 v{G+k}, v{G+k}, v{G+4*hh+k}")
    A("  s_waitcnt vmcnt(0)")
    A(f"  v_lshlrev_b32 v{T}, 16, v10"); A(f"  v_and_b32 v{T+1}, {sMASK}, v10")
    A(f"  v_lshlrev_b32 v{T+2}, 16, v11"); A(f"  v_and_b32 v{T+3}, {sMASK}, v11")
    for k in range(4): A(f"  v_fmac_f32 v{G+k}, v8, v{T+k}")
    A(f"  v_cvt_pk_bf16_f32 v{T}, v{G}, v{G+1}"); A(f"  v_cvt_pk_bf16_f32 v{T+1}, v{G+2}, v{G+3}")
    A("  s_mul_i32 s7, s5, 1152"); A("  s_mul_i32 s12, s3, 144"); A("  s_add_u32 s7, s7, s12")
    A(f"  buffer_store_dwordx2 v[{T}:{T+1}], v1, {OUT}, s7 offen")
    A("L_fin:")
    if stamps:
        A("  s_mov_b64 exec, 1")
        A("  s_memrealtime s[12:13]")
        A("  s_waitcnt lgkmcnt(0) vmcnt(0)")
        if dstamps:
            A("  s_cmp_lg_u32 s3, 0"); A("  s_cbranch_scc1 L_end")
            A("  s_not_b32 s7, s98")
            items = [(1, "s7", None), (2, "s56", None), (3, "s58", None), (4, "s62", None), (5, "s12", None)]
            for idx, r, _ in items:
                A(f"  v_mov_b32 v4, {r}"); A(f"  v_mov_b32 v5, {4*idx}")
                A("  global_atomic_umax v5, v4, s[40:41]")
                A("  s_nop 1")
            for idx, r in [(6, "s56"), (7, "s58"), (9, "s62"), (10, "s12")]:
                A(f"  s_sub_u32 s7, {r}, s98")
                A(f"  v_mov_b32 v4, s7"); A(f"  v_mov_b32 v5, {4*idx}")
                A("  global_atomic_add v5, v4, s[40:41]")
                A("  s_nop 1")
            A("  s_branch L_end")
        A("  s_and_b32 s7, s3, 3"); A("  s_cmp_lg_u32 s7, 0"); A("  s_cbranch_scc1 L_end")
        A("  s_lshl_b32 s7, s2, 8"); A("  s_add_u32 s7, s7, 0x20000000")
        A("  s_lshl_b32 s10, s3, 5"); A("  s_add_u32 s7, s7, s10")
        A("  v_mov_b32 v1, 0")
        A("  v_mov_b32 v4, s98"); A("  v_mov_b32 v5, s99"); A("  v_mov_b32 v6, s12"); A("  v_mov_b32 v7, s13")
        A(f"  buffer_store_dwordx4 v[4:7], v1, {WS}, s7 offen")
        A("  s_getreg_b32 s13, hwreg(HW_REG_XCC_ID)")
        A("  v_mov_b32 v8, s13"); A("  v_mov_b32 v9, 0"); A("  v_mov_b32 v10, s100"); A("  v_mov_b32 v11, s101")
        A(f"  buffer_store_dwordx4 v[8:11], v1, {WS}, s7 offen offset:16")
        A("  s_cmp_lg_u32 s3, 0"); A("  s_cbranch_scc1 L_sth")
        for i, r in enumerate(STR):
            A(f"  v_mov_b32 v12, s{r}"); A(f"  v_mov_b32 v13, s{r+1}")
            A(f"  buffer_store_dwordx2 v[12:13], v1, {WS}, s7 offen offset:{32+8*i}")
            A("  s_nop 1")
        A("  s_branch L_end")
        A("L_sth:")
        for i, r in enumerate(STH[:3]):
            A(f"  v_mov_b32 v12, s{r}"); A(f"  v_mov_b32 v13, s{r+1}")
            A(f"  buffer_store_dwordx2 v[12:13], v1, {WS}, s7 offen offset:{32+8*i}")
            A("  s_nop 1")
    A("L_end:")
    A("  s_endpgm")
    A('.section .rodata,"a"'); A(".p2align 6"); A(f".amdhsa_kernel {KN}")
    A("  .amdhsa_next_free_vgpr 256"); A("  .amdhsa_next_free_sgpr 102"); A("  .amdhsa_accum_offset 256")
    A("  .amdhsa_group_segment_fixed_size 0"); A("  .amdhsa_kernarg_size 112"); A("  .amdhsa_user_sgpr_count 2")
    A("  .amdhsa_user_sgpr_kernarg_segment_ptr 1"); A("  .amdhsa_system_sgpr_workgroup_id_x 1"); A(".end_amdhsa_kernel")
    return A.fix()

if __name__ == "__main__":
    import argparse
    ap = argparse.ArgumentParser()
    ap.add_argument("-o", default="k.s")
    ap.add_argument("--R", type=int, default=5)
    ap.add_argument("--stamps", action="store_true")
    ap.add_argument("--dbg", action="store_true")
    ap.add_argument("--wflags", default="nt")
    ap.add_argument("--npre", type=int, default=32)
    ap.add_argument("--kflags", default="nt")
    ap.add_argument("--vflags", default=None)
    ap.add_argument("--dstamps", action="store_true")
    ap.add_argument("--RV", type=int, default=None)
    ap.add_argument("--RVsel", default=None)
    ap.add_argument("--norot", action="store_true")
    ap.add_argument("--skipmlp", action="store_true")
    ap.add_argument("--HRW", type=int, default=8)
    ap.add_argument("--H2", type=int, default=6)
    a = ap.parse_args()
    open(a.o, "w").write(gen(R=a.R, stamps=a.stamps, dbg=a.dbg, wflags=a.wflags, NPRE=a.npre, kvflags=a.kflags, vflags=a.vflags, dstamps=a.dstamps, RV=a.RV, RVsel=a.RVsel, rot=not a.norot, skipmlp=a.skipmlp, HRW=a.HRW, H2=a.H2))
    print("wrote", a.o)
```

```python
import sys, math, struct
from asmlib import Asm

KN = "gated_mix__mha_block_cached__mixer_channel_mlp__decode_kernel"
HEADER = open("gated_mix__mha_block_cached__mixer_channel_mlp__decode.s.ref").read().split("; Override launch")[0]
f2u = lambda x: "0x%08x" % struct.unpack("<I", struct.pack("<f", x))[0]

QP   = 0
OP   = 2048
SC   = 4096
ML   = SC + 4 * 4096 + 256
GATE = ML + 32
HCNT = GATE + 4
YL   = ML + 64
HP   = YL + 2560
OUTP = HP + 6912
LDS_TOTAL = OUTP + 9216
TAG = 0x5AFE1234
SPIN_MAX = 100000
INBOX_STRIDE = 5120

class Q:
    def __init__(self, items=None): self.q = list(items or [])
    def issue(self, x): self.q.append(x)
    def wait_for(self, x):
        if x not in self.q: return None
        i = self.q.index(x)
        n = len(self.q) - 1 - i
        self.q = self.q[i + 1:]
        return n

def gen(R=5, kflags="nt", vflags="nt", wflags="", stamps=False, dbg=False, HRW=2, H2=2, HWO=4, RB=None, NB=0, EK=1, EBAR=4,
        poll_sleep=2, prio=False, rot=True, hfake=False, skiph=False):
    A = Asm()
    S = 16
    NPRE = 32
    STR = [56, 58, 60, 62, 64, 66]
    STH = [44, 46, 56, 58, 8]
    def stamp(regs, i):
        if stamps:
            A(f"  s_memrealtime s[{regs[i]}:{regs[i]+1}]"); A("  s_waitcnt lgkmcnt(0)")
    A(HEADER.rstrip())
    A(f"; @launch grid=(256,1,1) block=(512,1,1) lds={LDS_TOTAL}")
    A('.amdgcn_target "amdgcn-amd-amdhsa--gfx950"')
    A(".text"); A(f".globl {KN}"); A(".p2align 8"); A(f".type {KN},@function"); A(f"{KN}:")
    KV = "s[44:47]"; WQ = "s[48:51]"; XA = "s[52:55]"; GW = "s[60:63]"; W1 = "s[64:67]"
    B1 = "s[68:71]"; W2 = "s[72:75]"; WO = "s[76:79]"; B2 = "s[80:83]"; WS = "s[84:87]"; OUT = "s[88:91]"
    sMASK = "s92"; sM2 = "s[94:95]"; sM1 = "s[96:97]"
    ACC = 8; T = 16
    RING = 24; PRE = 88; SCR = 216; Qr = 232
    vP, vPn, vSC, vRG = "v236", "v237", "v238", "v239"
    AV = 240
    vMX, vLS, vNM = "v248", "v249", "v250"
    WT = 24; HRING = 168; HS = 200; OA = 216; HX = 232
    vG_, v1mG, vZ = "v246", "v247", "v248"
    ring = lambda s: f"v[{RING+4*(s%S)}:{RING+4*(s%S)+3}]"
    pre = lambda t: f"v[{PRE+4*t}:{PRE+4*t+3}]"
    wt = lambda i: f"v[{WT+4*i}:{WT+4*i+3}]"
    ktile = lambda t: pre(t) if t < NPRE else ring(t)
    t0, t1 = f"v{T}", f"v{T+1}"

    A("  s_cmp_ge_u32 s2, 256")
    A("  s_cbranch_scc1 L_end")
    A("  s_load_dwordx16 s[16:31], s[0:1], 0")
    A("  s_load_dwordx8 s[32:39], s[0:1], 64")
    A("  s_load_dwordx4 s[40:43], s[0:1], 96")
    if stamps: A("  s_memrealtime s[98:99]")
    A("  v_lshrrev_b32 v1, 6, v0")
    A("  v_and_b32 v0, 63, v0")
    A("  v_lshlrev_b32 v2, 4, v0")
    A("  v_readfirstlane_b32 s3, v1")
    A("  s_and_b32 s4, s2, 7")
    A("  s_lshl_b32 s4, s4, 2")
    A("  s_bfe_u32 s7, s2, 0x20003")
    A("  s_or_b32 s4, s4, s7")
    A("  s_lshr_b32 s5, s2, 5")
    A("  s_lshl_b32 s6, s5, 5")
    A("  s_or_b32 s6, s6, s4")
    A("  s_lshl_b32 s9, s6, 20")
    A("  s_lshl_b32 s13, s3, 10")
    A("  s_mov_b32 s46, 0x100000"); A("  s_mov_b32 s47, 0x20000")
    A("  v_lshrrev_b32 v3, 4, v0")
    A("  v_and_b32 v4, 15, v0")
    A("  s_mov_b32 s92, 0xffff0000")
    A("  s_mov_b32 s8, s13")
    A("  s_cmp_ge_u32 s3, 4")
    A("  s_cbranch_scc1 L_helper")
    q = Q()
    def kissue(t, flags):
        A(f"  buffer_load_dwordx4 {ktile(t) if t < 48 else ring(t)}, v2, {KV}, s8 offen {flags}")
        A("  s_addk_i32 s8, 4096")
        q.issue(t)
    def kwait(t):
        n = q.wait_for(t)
        if n is not None: A(f"  s_waitcnt vmcnt({n})")
    A("  s_waitcnt lgkmcnt(0)")
    A("  s_add_u32 s44, s18, s9"); A("  s_addc_u32 s45, s19, 0")
    for t in range(R): kissue(t, kflags)
    if prio: A("  s_setprio 2")
    A("  s_add_u32 s14, s20, s9"); A("  s_addc_u32 s15, s21, 0")
    A("  v_and_b32 v1, 2, v0"); A(f"  v_cmp_ne_u32 {sM2}, 0, v1")
    A("  v_and_b32 v1, 1, v0"); A(f"  v_cmp_ne_u32 {sM1}, 0, v1")
    A("  v_lshlrev_b32 v5, 5, v4"); A("  v_lshl_add_u32 v5, v3, 3, v5")
    A("  s_lshl_b32 s7, s3, 9"); A(f"  v_add_u32 {vRG}, s7, v5")
    A("  s_lshl_b32 s7, s3, 12"); A(f"  v_lshl_add_u32 {vSC}, v0, 2, s7")
    for k in range(8): A(f"  v_mov_b32 v{AV+k}, 0")
    A(f"  v_mov_b32 {vMX}, 0xff800000"); A(f"  v_mov_b32 {vLS}, 0")
    last_paced = 47 - EBAR
    for t in range(last_paced - R + 1):
        kwait(t); kissue(t + R, kflags)
    stamp(STR, 4)
    A("  s_barrier")
    for t in range(last_paced + 1, 48): kissue(t, kflags)
    A("  v_lshlrev_b32 v5, 5, v4")
    for w in range(2):
        A(f"  ds_read_b128 v[{SCR+8*w}:{SCR+8*w+3}], v5 offset:{QP+512*w}")
        A(f"  ds_read_b128 v[{SCR+8*w+4}:{SCR+8*w+7}], v5 offset:{QP+512*w+16}")
    A(f"  ds_read_b128 v[{ACC}:{ACC+3}], v5 offset:{QP+1024}")
    A(f"  ds_read_b128 v[{ACC+4}:{ACC+7}], v5 offset:{QP+1024+16}")
    A(f"  ds_read_b128 v[{T}:{T+3}], v5 offset:{QP+1536}")
    A(f"  ds_read_b128 v[{T+4}:{T+7}], v5 offset:{QP+1536+16}")
    A("  s_waitcnt lgkmcnt(0)")
    for k in range(8):
        A(f"  v_add_f32 v{SCR+k}, v{SCR+k}, v{SCR+8+k}")
        A(f"  v_add_f32 v{ACC+k}, v{ACC+k}, v{T+k}")
    for k in range(8): A(f"  v_add_f32 v{SCR+k}, v{SCR+k}, v{ACC+k}")
    for k in range(4): A(f"  v_cvt_pk_bf16_f32 v{Qr+k}, v{SCR+2*k}, v{SCR+2*k+1}")
    if dbg:
        A("  s_cmp_lg_u32 s3, 0"); A("  s_cbranch_scc1 L_dq")
        A("  s_mov_b32 s84, s42"); A("  s_mov_b32 s85, s43"); A("  s_mov_b32 s86, 0x40000000"); A("  s_mov_b32 s87, 0x20000")
        A("  s_lshl_b32 s7, s6, 8"); A("  s_add_u32 s7, s7, 0x30000000")
        A("  v_lshlrev_b32 v1, 4, v4")
        A(f"  buffer_store_dwordx4 v[{Qr}:{Qr+3}], v1, {WS}, s7 offen")
        A("  s_waitcnt vmcnt(0)")
        A("L_dq:")
    stamp(STR, 0)
    a = lambda i: f"v{SCR+i}"
    def kdots(u, r):
        for k in range(4):
            c = "0" if k == 0 else a(u)
            A(f"  v_dot2_f32_bf16 {a(u)}, v{r+k}, v{Qr+k}, {c}")
    def kreduce():
        for i in range(8):
            A(f"  v_add_f32_dpp {a(i)}, {a(i)}, {a(i)} row_ror:8 row_mask:0xf bank_mask:0x3")
            A(f"  v_add_f32_dpp {a(i)}, {a(i+8)}, {a(i+8)} row_ror:8 row_mask:0xf bank_mask:0xc")
        for i in range(4):
            A(f"  v_add_f32_dpp {a(i)}, {a(i)}, {a(i)} row_shl:4 row_mask:0xf bank_mask:0x5")
            A(f"  v_add_f32_dpp {a(i)}, {a(i+4)}, {a(i+4)} row_shr:4 row_mask:0xf bank_mask:0xa")
        for i in range(2):
            A(f"  v_cndmask_b32 v{T+i}, {a(i)}, {a(i+2)}, {sM2}")
            A(f"  v_cndmask_b32 v{T+2+i}, {a(i+2)}, {a(i)}, {sM2}")
        for i in range(2):
            A(f"  v_add_f32_dpp v{T+i}, v{T+2+i}, v{T+i} quad_perm:[2,3,0,1] row_mask:0xf bank_mask:0xf")
        A(f"  v_cndmask_b32 v{T+4}, v{T}, v{T+1}, {sM1}")
        A(f"  v_cndmask_b32 v{T+5}, v{T+1}, v{T}, {sM1}")
        A(f"  v_add_f32_dpp v{T+4}, v{T+5}, v{T+4} quad_perm:[1,0,3,2] row_mask:0xf bank_mask:0xf")
        A(f"  ds_write_b32 {vSC}, v{T+4} offset:{SC}")
        A(f"  v_max_f32 {vMX}, {vMX}, v{T+4}")
        A(f"  v_add_u32 {vSC}, 256, {vSC}")
    for blk in range(2):
        for u in range(16): kdots(u, PRE + 4 * (16 * blk + u))
        kreduce()
    nxt = 48
    for u in range(16):
        t = 32 + u
        kwait(t)
        want = t + R + (EK if u == 15 else 0)
        while nxt <= want:
            kissue(nxt, kflags); nxt += 1
        kdots(u, RING + 4 * (u % S))
    kreduce()
    entry_state = [x - 48 for x in q.q]
    A("  s_mov_b32 s12, 3")
    A("L_kloop:")
    if stamps:
        A("  s_cmp_lg_u32 s12, 9"); A("  s_cbranch_scc1 L_nomid")
        A(f"  s_memrealtime s[{STR[5]}:{STR[5]+1}]"); A("  s_waitcnt lgkmcnt(0)")
        A("L_nomid:")
    q = Q(entry_state); nxt = R + EK
    def kissue2(t, flags):
        if t == 16:
            A("  s_cmp_eq_u32 s12, 15")
            A("  s_cselect_b32 s44, s14, s44"); A("  s_cselect_b32 s45, s15, s45"); A("  s_cselect_b32 s8, s13, s8")
        A(f"  buffer_load_dwordx4 {ring(t)}, v2, {KV}, s8 offen {flags}")
        A("  s_addk_i32 s8, 4096")
        q.issue(t)
    for u in range(16):
        kwait(u)
        want = u + R + (EK if u == 15 else 0)
        while nxt <= want:
            kissue2(nxt, kflags); nxt += 1
        kdots(u, RING + 4 * (u % S))
    kreduce()
    assert [x - 16 for x in q.q] == entry_state, (q.q, entry_state)
    A("  s_add_u32 s12, s12, 1")
    A("  s_cmp_lt_u32 s12, 16")
    A("  s_cbranch_scc1 L_kloop")
    stamp(STR, 1)
    A(f"  v_subrev_u32 {vSC}, 4096, {vSC}")
    A(f"  ds_read_b32 {vPn}, {vSC} offset:{SC}")
    def allreduce(op, v, tmp):
        for sh in (8, 4, 2, 1):
            A(f"  {op}_dpp {v}, {v}, {v} row_ror:{sh} row_mask:0xf bank_mask:0xf")
        A(f"  v_mov_b32 {tmp}, {v}"); A(f"  v_permlane16_swap_b32 {v}, {tmp}"); A(f"  {op} {v}, {v}, {tmp}")
        A(f"  v_mov_b32 {tmp}, {v}"); A(f"  v_permlane32_swap_b32 {v}, {tmp}"); A(f"  {op} {v}, {v}, {tmp}")
    allreduce("v_max_f32", vMX, t1)
    SC2 = (128 ** -0.5) * math.log2(math.e)
    A(f"  s_mov_b32 s7, {f2u(SC2)}")
    A(f"  v_mul_f32 {vMX}, s7, {vMX}")
    if dbg:
        A("  s_mov_b32 s84, s42"); A("  s_mov_b32 s85, s43"); A("  s_mov_b32 s86, 0x40000000"); A("  s_mov_b32 s87, 0x20000")
        A("  s_lshl_b32 s10, s6, 2"); A("  s_add_u32 s10, s10, s3"); A("  s_lshl_b32 s10, s10, 12"); A("  s_add_u32 s10, s10, 0x31000000")
        A("  v_lshlrev_b32 v1, 2, v0")
        for i in range(16): A(f"  ds_read_b32 {a(i)}, {vSC} offset:{SC+256*i}")
        A("  s_waitcnt lgkmcnt(0)")
        for i in range(16): A(f"  buffer_store_dword {a(i)}, v1, {WS}, s10 offen offset:{256*i}")
        A("  s_waitcnt vmcnt(0)")
    A("  s_waitcnt lgkmcnt(0)")
    A(f"  v_fma_f32 {vP}, {vPn}, s7, -{vMX}")
    A(f"  v_exp_f32 {vP}, {vP}")
    A("  s_mov_b32 s12, 0")
    stamp(STR, 2)
    def unpack(r):
        for k in range(4):
            A(f"  v_lshlrev_b32 v{T+2*k}, 16, v{r+k}")
            A(f"  v_and_b32 v{T+2*k+1}, {sMASK}, v{r+k}")
    def vloop(Rx, state, extra_first, lab, nend):
        qq = Q(state)
        n = max(state) + 1
        while n < Rx:
            A(f"  buffer_load_dwordx4 {ring(n)}, v2, {KV}, s8 offen {vflags}"); A("  s_addk_i32 s8, 4096"); qq.issue(n); n += 1
        steady = list(range(Rx))
        def body(qq, n):
            A(f"  v_add_u32 {vSC}, 256, {vSC}")
            A(f"  ds_read_b32 {vPn}, {vSC} offset:{SC}")
            A(f"  v_add_f32 {vLS}, {vLS}, {vP}")
            for u in range(16):
                w = qq.wait_for(u)
                if w is not None: A(f"  s_waitcnt vmcnt({w})")
                while n <= u + Rx:
                    A(f"  buffer_load_dwordx4 {ring(n)}, v2, {KV}, s8 offen {vflags}"); A("  s_addk_i32 s8, 4096"); qq.issue(n); n += 1
                unpack(RING + 4 * (u % S))
                for k in range(8):
                    A(f"  v_fmac_f32_dpp v{AV+k}, {vP}, v{T+k} row_newbcast:{u} row_mask:0xf bank_mask:0xf")
                if u == 8:
                    A("  s_waitcnt lgkmcnt(0)")
                    A(f"  v_fma_f32 {vPn}, {vPn}, s7, -{vMX}")
                    A(f"  v_exp_f32 {vPn}, {vPn}")
            A(f"  v_mov_b32 {vP}, {vPn}")
            A("  s_add_u32 s12, s12, 1")
            return [x - 16 for x in qq.q]
        if qq.q != steady:
            st = body(qq, n)
            assert st == steady, (st, steady)
        A(f"{lab}:")
        st = body(Q(steady), Rx)
        assert st == steady
        A(f"  s_cmp_lt_u32 s12, {nend}")
        A(f"  s_cbranch_scc1 {lab}")
        return steady
    st = entry_state
    if RB is None or NB == 0:
        vloop(R, st, 0, "L_vloopA", 16)
    else:
        st = vloop(R, st, 0, "L_vloopA", 16 - NB)
        vloop(RB, st, 0, "L_vloopB", 16)
    stamp(STR, 3)
    def reduce_g(a_):
        for j in range(4): A(f"  v_permlane32_swap_b32 v{a_+j}, v{a_+j+4}")
        for j in range(4): A(f"  v_add_f32 v{a_+j}, v{a_+j}, v{a_+j+4}")
        for j in range(2): A(f"  v_permlane16_swap_b32 v{a_+j}, v{a_+j+2}")
        for j in range(2): A(f"  v_add_f32 v{a_+j}, v{a_+j}, v{a_+j+2}")
    reduce_g(AV)
    A(f"  ds_write_b64 {vRG}, v[{AV}:{AV+1}] offset:{OP}")
    allreduce("v_add_f32", vLS, t1)
    A(f"  v_mov_b32 v{T+2}, {vMX}"); A(f"  v_mov_b32 v{T+3}, {vLS}")
    A("  s_lshl_b32 s7, s3, 3"); A("  v_mov_b32 v1, s7")
    A(f"  ds_write_b64 v1, v[{T+2}:{T+3}] offset:{ML}")
    A("  s_waitcnt lgkmcnt(0)")
    A("  s_barrier")
    A("  s_barrier")
    A("  s_branch L_final")

    A("L_helper:")
    A("  s_sub_u32 s12, s3, 4")
    A("  s_mul_i32 s7, s5, 1152")
    A("  s_mul_i32 s14, s5, 9"); A("  s_lshr_b32 s14, s14, 1")
    if not rot: A("  s_mov_b32 s14, 0")
    for k in range(3):
        A(f"  s_add_u32 s15, s14, {16*k}")
        A(f"  v_add_u32 v{6+k}, s15, v4")
        A(f"  v_subrev_u32 v5, 36, v{6+k}")
        A(f"  v_min_u32 v{6+k}, v{6+k}, v5")
        A(f"  v_lshlrev_b32 v{6+k}, 3, v{6+k}")
        A(f"  v_lshl_add_u32 v{6+k}, v3, 1, v{6+k}")
    A("  v_lshlrev_b32 v1, 4, v4"); A("  v_lshl_add_u32 v1, v3, 13, v1")
    A(f"  s_mul_i32 s10, s12, {144*8192}"); A("  s_lshl_b32 s11, s4, 8"); A("  s_add_u32 s10, s10, s11")
    A(f"  s_add_u32 s15, s10, {36*32768}")
    A("  s_mov_b32 s9, s10")
    A("  s_lshl_b32 s14, s14, 15"); A("  s_add_u32 s10, s10, s14")
    A("  s_mul_i32 s11, s12, 288")
    A(f"  s_mov_b32 s50, {576*8192}"); A("  s_mov_b32 s51, 0x20000")
    A("  s_mov_b32 s54, 1152"); A("  s_mov_b32 s55, 0x20000")
    A("  s_waitcnt lgkmcnt(0)")
    A("  s_add_u32 s52, s16, s7"); A("  s_addc_u32 s53, s17, 0")
    A("  s_mov_b32 s48, s22"); A("  s_mov_b32 s49, s23")
    for k in range(3): A(f"  buffer_load_ushort v{6+k}, v{6+k}, {XA}, s11 offen")
    for i in range(36):
        A(f"  buffer_load_dwordx4 {wt(i)}, v1, {WQ}, s10 offen {wflags}")
        if i < 35:
            A("  s_add_u32 s10, s10, 32768")
            A("  s_cmp_eq_u32 s10, s15"); A("  s_cselect_b32 s10, s9, s10")
    A("  s_mov_b32 s60, s36"); A("  s_mov_b32 s61, s37"); A("  s_mov_b32 s62, 1152"); A("  s_mov_b32 s63, 0x20000")
    A("  s_mov_b32 s68, s30"); A("  s_mov_b32 s69, s31"); A("  s_mov_b32 s70, 9216"); A("  s_mov_b32 s71, 0x20000")
    A("  v_lshlrev_b32 v1, 2, v0")
    for k in range(5): A(f"  buffer_load_dword v{HX+k}, v1, {XA}, 0 offen offset:{256*k}")
    for k in range(5): A(f"  buffer_load_dword v{HX+5+k}, v1, {GW}, 0 offen offset:{256*k}")
    A("  s_mul_i32 s10, s4, 288"); A("  s_mul_i32 s11, s12, 72"); A("  s_add_u32 s10, s10, s11")
    A("  v_lshlrev_b32 v1, 1, v0")
    A(f"  buffer_load_ushort v{HX+10}, v1, {B1}, s10 offen")
    NYOUNG = 11
    A("  s_mov_b32 s76, s24"); A("  s_mov_b32 s77, s25"); A(f"  s_mov_b32 s78, {4096*1152}"); A("  s_mov_b32 s79, 0x20000")
    A("  s_mov_b32 s84, s42"); A("  s_mov_b32 s85, s43"); A("  s_mov_b32 s86, 0x40000000"); A("  s_mov_b32 s87, 0x20000")
    for k in range(16): A(f"  v_mov_b32 v{OA+k}, 0")
    A(f"  s_waitcnt vmcnt({36+NYOUNG})")
    stamp(STH, 3)
    for k in range(3): A(f"  v_lshlrev_b32 v{6+k}, 16, v{6+k}")
    QA = HS
    for i in range(36):
        A(f"  s_waitcnt vmcnt({35-i+NYOUNG})")
        unpack(WT + 4 * i)
        src = f"v{6 + i // 16}"
        for k in range(8):
            op = "v_mul_f32_dpp" if i == 0 else "v_fmac_f32_dpp"
            A(f"  {op} v{QA+k}, {src}, v{T+k} row_newbcast:{i%16} row_mask:0xf bank_mask:0xf")
    reduce_g(QA)
    A("  v_lshlrev_b32 v5, 5, v4"); A("  v_lshl_add_u32 v5, v3, 3, v5")
    A("  s_lshl_b32 s7, s12, 9"); A("  v_add_u32 v5, s7, v5")
    A(f"  ds_write_b64 v5, v[{QA}:{QA+1}] offset:{QP}")
    A("  v_mov_b32 v1, 0"); A(f"  v_mov_b32 v5, {HCNT}")
    A("  ds_write_b32 v5, v1")
    A("  s_waitcnt lgkmcnt(0)")
    stamp(STH, 2)
    A("  s_barrier")
    A("  s_cmp_lg_u32 s3, 4"); A("  s_cbranch_scc1 L_noclr")
    for k in range(4): A(f"  v_mov_b32 v{T+k}, 0")
    A(f"  s_mul_i32 s7, s6, {INBOX_STRIDE}")
    for k in range(5):
        A(f"  buffer_store_dwordx4 v[{T}:{T+3}], v2, {WS}, s7 offen offset:{1024*k if k < 4 else 0} sc1" if k < 4 else
          f"  s_add_u32 s7, s7, 4096\n  buffer_store_dwordx4 v[{T}:{T+3}], v2, {WS}, s7 offen sc1")
    A("  s_waitcnt vmcnt(0)")
    A("  s_mov_b64 exec, 1")
    A("  s_lshl_b32 s7, 1, s4"); A("  v_mov_b32 v5, s7"); A("  s_lshl_b32 s7, s5, 2"); A("  v_mov_b32 v6, s7")
    A("  global_atomic_or v6, v5, s[40:41] sc1")
    A("  s_mov_b64 exec, -1")
    A("L_noclr:")
    X = HS
    A("  s_waitcnt vmcnt(0)")
    for k in range(5):
        A(f"  v_lshlrev_b32 v{X+2*k}, 16, v{HX+k}")
        A(f"  v_and_b32 v{X+2*k+1}, {sMASK}, v{HX+k}")
    A(f"  v_add_f32 {t0}, v{X}, v{X+1}")
    for k in range(2, 10): A(f"  v_add_f32 {t0}, {t0}, v{X+k}")
    allreduce("v_add_f32", t0, t1)
    A(f"  v_mul_f32 {t0}, {f2u(1.0/576)}, {t0}")
    for k in range(10): A(f"  v_sub_f32 v{X+k}, v{X+k}, {t0}")
    A("  v_cmp_gt_u32 vcc, 32, v0")
    A(f"  v_cndmask_b32 v{X+8}, 0, v{X+8}, vcc"); A(f"  v_cndmask_b32 v{X+9}, 0, v{X+9}, vcc")
    A(f"  v_mul_f32 {t0}, v{X}, v{X}")
    for k in range(1, 10): A(f"  v_fmac_f32 {t0}, v{X+k}, v{X+k}")
    allreduce("v_add_f32", t0, t1)
    A(f"  v_mov_b32 {t1}, {f2u(1e-5)}")
    A(f"  v_fmac_f32 {t1}, {f2u(1.0/576)}, {t0}")
    A(f"  v_rsq_f32 {t1}, {t1}")
    for k in range(10): A(f"  v_mul_f32 v{X+k}, v{X+k}, {t1}")
    A("  v_lshlrev_b32 v1, 3, v0")
    for k in range(5): A(f"  ds_write_b64 v1, v[{X+2*k}:{X+2*k+1}] offset:{YL+512*k}")
    A(f"  v_dot2_f32_bf16 {t0}, v{HX}, v{HX+5}, 0")
    for k in range(1, 5): A(f"  v_dot2_f32_bf16 {t0}, v{HX+k}, v{HX+5+k}, {t0}")
    allreduce("v_add_f32", t0, t1)
    A(f"  v_mul_f32 {t0}, {f2u(-math.log2(math.e))}, {t0}")
    A(f"  v_exp_f32 {t0}, {t0}")
    A(f"  v_add_f32 {t0}, 1.0, {t0}")
    A(f"  v_rcp_f32 {vG_}, {t0}")
    A(f"  v_sub_f32 {v1mG}, 1.0, {vG_}")
    A(f"  v_mov_b32 v1, {GATE}")
    A(f"  ds_write_b32 v1, {vG_}")
    if skiph: A("  s_branch L_rdy0")
    A("  v_mul_u32_u24 v5, 57, v0"); A("  v_lshrrev_b32 v5, 10, v5")
    A("  v_mul_u32_u24 v6, 18, v5"); A("  v_sub_u32 v6, v0, v6")
    A("  v_mul_u32_u24 v7, 9216, v5"); A("  v_lshl_add_u32 v7, v6, 4, v7")
    A("  s_mov_b32 s64, s28"); A("  s_mov_b32 s65, s29"); A(f"  s_mov_b32 s66, {576*9216}"); A("  s_mov_b32 s67, 0x20000")
    A(f"  s_mul_i32 s10, s12, {144*9216}"); A("  s_mul_i32 s11, s4, 288"); A("  s_add_u32 s10, s10, s11")
    A("  s_mul_i32 s11, s12, 576")
    A("  v_lshl_add_u32 v1, v5, 2, s11")
    hring = lambda s: f"v[{HRING+4*s}:{HRING+4*s+3}]"
    for u in range(HRW):
        A(f"  buffer_load_dwordx4 {hring(u)}, v7, {W1}, s10 offen {wflags}")
        A("  s_add_u32 s10, s10, %d" % (0 if hfake else 27648))
    for k in range(8): A(f"  v_mov_b32 v{ACC+k}, 0")
    A("  s_mov_b32 s11, 0")
    A("  s_waitcnt lgkmcnt(0)")
    A("L_w1:")
    for u in range(HRW): A(f"  ds_read_b32 v{HS+u}, v1 offset:{YL+12*u}")
    A(f"  v_add_u32 v1, {12*HRW}, v1")
    A(f"  s_cmp_eq_u32 s11, {48//HRW-1}")
    A("  s_cselect_b32 s10, 0x40000000, s10")
    A("  s_waitcnt lgkmcnt(0)")
    for u in range(HRW):
        A(f"  s_waitcnt vmcnt({HRW-1})")
        unpack(HRING + 4 * u)
        A(f"  buffer_load_dwordx4 {hring(u)}, v7, {W1}, s10 offen {wflags}")
        A("  s_add_u32 s10, s10, %d" % (0 if hfake else 27648))
        for k in range(8): A(f"  v_fmac_f32 v{ACC+k}, v{HS+u}, v{T+k}")
    A("  s_add_u32 s11, s11, 1")
    A(f"  s_cmp_lt_u32 s11, {48//HRW}")
    A("  s_cbranch_scc1 L_w1")
    stamp(STH, 0)
    A("  s_mul_i32 s11, s12, 3")
    A("  v_add_u32 v1, s11, v5"); A("  v_mul_u32_u24 v1, 576, v1"); A("  v_lshl_add_u32 v1, v6, 5, v1")
    A("  v_cmp_gt_u32 vcc, 54, v0")
    A("  s_and_saveexec_b64 s[10:11], vcc")
    A(f"  ds_write_b128 v1, v[{ACC}:{ACC+3}] offset:{HP}")
    A(f"  ds_write_b128 v1, v[{ACC+4}:{ACC+7}] offset:{HP+16}")
    A("  s_mov_b64 exec, 1")
    A(f"  v_mov_b32 v1, {HCNT}"); A("  v_mov_b32 v5, 1")
    A("  ds_add_u32 v1, v5")
    A("  s_mov_b64 exec, -1")
    A(f"  v_mov_b32 v1, {HCNT}")
    A("  s_mov_b32 s93, 0")
    A("L_hspin:")
    A("  ds_read_b32 v5, v1")
    A("  s_waitcnt lgkmcnt(0)")
    A("  v_readfirstlane_b32 s10, v5")
    A("  s_cmp_ge_u32 s10, 4")
    A("  s_cbranch_scc1 L_hgo")
    A("  s_sleep 4")
    A("  s_add_u32 s93, s93, 1"); A(f"  s_cmp_lt_u32 s93, {SPIN_MAX}")
    A("  s_cbranch_scc1 L_hspin")
    A("L_hgo:")
    A("  s_mul_i32 s11, s12, 144")
    A("  v_min_u32 v1, 35, v0")
    A("  v_lshl_add_u32 v1, v1, 2, s11")
    for k in range(12): A(f"  ds_read_b32 v{HS+k}, v1 offset:{HP+576*k}")
    A(f"  v_lshlrev_b32 {t0}, 16, v{HX+10}")
    A("  s_waitcnt lgkmcnt(0)")
    for k in range(12): A(f"  v_add_f32 {t0}, {t0}, v{HS+k}")
    k0 = math.sqrt(2 / math.pi)
    A(f"  v_mul_f32 {t1}, {t0}, {t0}")
    A(f"  v_mov_b32 v{T+2}, {f2u(-2*k0*math.log2(math.e))}")
    A(f"  v_fmac_f32 v{T+2}, {f2u(-2*k0*0.044715*math.log2(math.e))}, {t1}")
    A(f"  v_mul_f32 v{T+2}, v{T+2}, {t0}")
    A(f"  v_exp_f32 v{T+2}, v{T+2}")
    A(f"  v_add_f32 v{T+2}, 1.0, v{T+2}")
    A(f"  v_rcp_f32 v{T+2}, v{T+2}")
    A(f"  v_mul_f32 {t0}, {t0}, v{T+2}")
    A(f"  v_mul_f32 {t0}, {v1mG}, {t0}")
    A("  v_cmp_gt_u32 vcc, 36, v0")
    A(f"  v_cndmask_b32 {vZ}, 0, {t0}, vcc")
    if dbg:
        A("  s_lshl_b32 s7, s6, 2"); A("  s_add_u32 s7, s7, s12"); A("  s_lshl_b32 s7, s7, 8"); A("  s_add_u32 s7, s7, 0x32000000")
        A("  v_lshlrev_b32 v1, 2, v0")
        A(f"  buffer_store_dword {vZ}, v1, {WS}, s7 offen")
        A("  s_waitcnt vmcnt(0)")
    A("  s_mul_i32 s10, s4, 144"); A("  s_mul_i32 s11, s12, 36"); A("  s_add_u32 s10, s10, s11"); A("  s_mul_i32 s10, s10, 1152")
    A("  s_add_u32 s72, s32, s10"); A("  s_addc_u32 s73, s33, 0"); A(f"  s_mov_b32 s74, {36*1152}"); A("  s_mov_b32 s75, 0x20000")
    A("  s_mov_b32 s10, 0")
    for u in range(H2):
        A(f"  buffer_load_dwordx4 {hring(u)}, v2, {W2}, s10 offen {wflags}")
        A("  s_addk_i32 s10, %d" % (0 if hfake else 1152))
    A("  s_mov_b32 s11, 0")
    A("L_w2:")
    for u in range(H2):
        A(f"  v_readlane_b32 s7, {vZ}, s11")
        A("  s_add_u32 s11, s11, 1")
        A(f"  s_waitcnt vmcnt({H2-1})")
        unpack(HRING + 4 * u)
        A(f"  buffer_load_dwordx4 {hring(u)}, v2, {W2}, s10 offen {wflags}")
        A("  s_addk_i32 s10, %d" % (0 if hfake else 1152))
        for k in range(8): A(f"  v_fmac_f32 v{OA+k}, s7, v{T+k}")
    A("  s_cmp_lt_u32 s11, 36")
    A("  s_cbranch_scc1 L_w2")
    stamp(STH, 1)
    A("  v_lshrrev_b32 v5, 3, v0"); A("  v_mul_u32_u24 v6, 1152, v5")
    A("  v_and_b32 v1, 7, v0"); A("  v_lshl_add_u32 v6, v1, 4, v6")
    A("  s_mov_b32 s10, 0")
    for e in range(5):
        A(f"  buffer_load_dwordx4 {wt(e)}, v6, {W2}, s10 offen offset:1024 {wflags}")
        A(f"  s_addk_i32 s10, {8*1152}")
    A("  v_lshlrev_b32 v5, 2, v5")
    for e in range(5):
        A(f"  ds_bpermute_b32 v{HS+e}, v5, {vZ}")
        A("  v_add_u32 v5, 32, v5")
    A("  s_waitcnt lgkmcnt(0)")
    for e in range(5):
        A(f"  s_waitcnt vmcnt({4-e})")
        unpack(WT + 4 * e)
        for k in range(8): A(f"  v_fmac_f32 v{OA+8+k}, v{HS+e}, v{T+k}")
    A("  s_lshl_b32 s10, s4, 7"); A("  s_lshl_b32 s11, s12, 5"); A("  s_add_u32 s10, s10, s11"); A("  s_mul_i32 s10, s10, 1152")
    A("  v_lshrrev_b32 v5, 3, v0"); A("  v_mul_u32_u24 v5, 2304, v5")
    A("  v_and_b32 v1, 7, v0"); A("  v_lshl_add_u32 v5, v1, 4, v5")
    for e in range(2):
        for par in range(2):
            A(f"  buffer_load_dwordx4 {wt(32+2*e+par)}, v5, {WO}, s10 offen offset:{1024+1152*par} {wflags}")
        if e == 0: A(f"  s_add_u32 s11, s10, {16*1152}"); A("  s_mov_b32 s7, s10"); A("  s_mov_b32 s10, s11")
    A("  s_mov_b32 s10, s7")
    for r in range(32):
        A(f"  s_waitcnt vmcnt({HWO-1})")
        A(f"  buffer_load_dwordx4 {wt(r)}, v2, {WO}, s10 offen {wflags}")
        A("  s_addk_i32 s10, %d" % (0 if hfake else 1152))
    A("L_rdy0:")
    A("  s_cmp_lg_u32 s3, 4"); A("  s_cbranch_scc1 L_rdy")
    A("  s_lshl_b32 s7, s5, 2"); A("  v_mov_b32 v6, s7")
    A("  s_mov_b32 s93, 0")
    A("L_rdyspin:")
    A("  global_load_dword v7, v6, s[40:41] sc1")
    A("  s_waitcnt vmcnt(0)")
    A("  v_readfirstlane_b32 s7, v7")
    A("  s_cmp_eq_u32 s7, -1")
    A("  s_cbranch_scc1 L_rdy")
    A("  s_sleep 8")
    A("  s_add_u32 s93, s93, 1"); A(f"  s_cmp_lt_u32 s93, {SPIN_MAX}")
    A("  s_cbranch_scc1 L_rdyspin")
    A("L_rdy:")
    A("  s_mov_b32 s10, 0x05040100"); A("  s_mov_b32 s11, 0x07060302")
    A("  s_waitcnt vmcnt(0)")
    for k in range(18):
        for i in range(4):
            a_, b_ = WT + 8 * k + i, WT + 8 * k + 4 + i
            tmp = T + (i % 4)
            A(f"  v_perm_b32 v{tmp}, v{b_}, v{a_}, s10")
            A(f"  v_perm_b32 v{b_}, v{b_}, v{a_}, s11")
            A(f"  v_mov_b32 v{a_}, v{tmp}")
    A("  s_lshl_b32 s7, s12, 7")
    A("  v_lshlrev_b32 v1, 9, v3"); A("  v_lshl_add_u32 v1, v4, 2, v1"); A("  v_add_u32 v1, s7, v1")
    A("  v_mov_b32 v5, 0")
    A("  v_lshlrev_b32 v6, 3, v3")
    A("  v_lshrrev_b32 v7, 3, v0"); A("  v_lshlrev_b32 v7, 3, v7")
    A("  s_mul_i32 s9, s12, 2304")
    A("  v_lshl_add_u32 v8, v0, 5, s9")
    A("  v_and_b32 v9, 7, v0"); A("  v_lshlrev_b32 v9, 3, v9")
    A("  v_bfe_u32 v10, v0, 3, 1"); A("  v_add_u32 v9, v9, v10"); A("  v_lshl_add_u32 v9, v3, 1, v9")
    A("  v_lshl_add_u32 v9, v9, 2, s9")
    A("  s_barrier")
    if stamps:
        A("  s_memrealtime s[100:101]"); A("  s_waitcnt lgkmcnt(0)")
    A(f"  ds_read_b32 v{T}, v1 offset:{OP}")
    A(f"  ds_read_b32 v{T+4}, v1 offset:{OP+64}")
    A(f"  ds_read_b128 v[{HS}:{HS+3}], v5 offset:{ML}")
    A(f"  ds_read_b128 v[{HS+4}:{HS+7}], v5 offset:{ML+16}")
    A(f"  ds_read_b32 v{T+1}, v6 offset:{ML}")
    A("  s_waitcnt lgkmcnt(0)")
    m0, l0, m1, l1, m2, l2, m3, l3 = [f"v{HS+i}" for i in range(8)]
    A(f"  v_max3_f32 v{T+2}, {m0}, {m1}, {m2}"); A(f"  v_max_f32 v{T+2}, v{T+2}, {m3}")
    for mm in (m0, m1, m2, m3, f"v{T+1}"): A(f"  v_sub_f32 {mm}, {mm}, v{T+2}")
    for mm in (m0, m1, m2, m3, f"v{T+1}"): A(f"  v_exp_f32 {mm}, {mm}")
    A(f"  v_mul_f32 v{T+3}, {m0}, {l0}")
    A(f"  v_fmac_f32 v{T+3}, {m1}, {l1}"); A(f"  v_fmac_f32 v{T+3}, {m2}, {l2}"); A(f"  v_fmac_f32 v{T+3}, {m3}, {l3}")
    A(f"  v_rcp_f32 v{T+3}, v{T+3}")
    A(f"  v_mul_f32 v{T}, v{T}, v{T+1}"); A(f"  v_mul_f32 v{T+4}, v{T+4}, v{T+1}")
    A(f"  v_mul_f32 v{T+3}, v{T+3}, {vG_}")
    A(f"  v_permlane32_swap_b32 v{T}, v{T+4}")
    A(f"  v_add_f32 v{T}, v{T}, v{T+4}")
    A(f"  v_mov_b32 v{T+1}, v{T}"); A(f"  v_permlane16_swap_b32 v{T}, v{T+1}"); A(f"  v_add_f32 v{T}, v{T}, v{T+1}")
    A(f"  v_mul_f32 v{T}, v{T}, v{T+3}")
    if dbg:
        A("  s_lshl_b32 s7, s6, 2"); A("  s_add_u32 s7, s7, s12"); A("  s_lshl_b32 s7, s7, 8"); A("  s_add_u32 s7, s7, 0x33000000")
        A("  v_lshlrev_b32 v1, 2, v0")
        A(f"  buffer_store_dword v{T}, v1, {WS}, s7 offen")
        A("  s_waitcnt vmcnt(0)")
    A(f"  v_mov_b32_dpp v{T+1}, v{T} quad_perm:[1,0,3,2] row_mask:0xf bank_mask:0xf")
    A(f"  v_cvt_pk_bf16_f32 v{T}, v{T}, v{T+1}")
    A(f"  ds_bpermute_b32 v{T+2}, v7, v{T}")
    A("  v_add_u32 v7, 128, v7")
    A(f"  ds_bpermute_b32 v{T+3}, v7, v{T}")
    ZS = 16
    for k in range(16): A(f"  v_readlane_b32 s{ZS+k}, v{T}, {2*k if k < 8 else 32 + 2*(k-8)}")
    for k in range(16):
        for i in range(4):
            A(f"  v_dot2c_f32_bf16 v{OA+2*i}, s{ZS+k}, v{WT+8*k+i}")
            A(f"  v_dot2c_f32_bf16 v{OA+2*i+1}, s{ZS+k}, v{WT+8*k+4+i}")
    A(f"  ds_write_b128 v8, v[{OA}:{OA+3}] offset:{OUTP}")
    A(f"  ds_write_b128 v8, v[{OA+4}:{OA+7}] offset:{OUTP+16}")
    A("  s_waitcnt lgkmcnt(2)")
    for e in range(2):
        for i in range(4):
            A(f"  v_dot2c_f32_bf16 v{OA+8+2*i}, v{T+2+e}, v{WT+128+8*e+i}")
            A(f"  v_dot2c_f32_bf16 v{OA+8+2*i+1}, v{T+2+e}, v{WT+128+8*e+4+i}")
    E = OA + 8
    for j in range(4): A(f"  v_permlane32_swap_b32 v{E+j}, v{E+j+4}")
    for j in range(4): A(f"  v_add_f32 v{E+j}, v{E+j}, v{E+j+4}")
    for j in range(2): A(f"  v_permlane16_swap_b32 v{E+j}, v{E+j+2}")
    for j in range(2): A(f"  v_add_f32 v{E+j}, v{E+j}, v{E+j+2}")
    A(f"  v_add_f32_dpp v{E}, v{E}, v{E} row_ror:8 row_mask:0xf bank_mask:0x3")
    A(f"  v_add_f32_dpp v{E}, v{E+1}, v{E+1} row_ror:8 row_mask:0xf bank_mask:0xc")
    A(f"  ds_write_b32 v9, v{E} offset:{OUTP+2048}")
    A("  s_waitcnt lgkmcnt(0)")
    A("  s_barrier")

    A("L_final:")
    F = 24
    A("  s_mov_b32 s84, s42"); A("  s_mov_b32 s85, s43"); A("  s_mov_b32 s86, 0x40000000"); A("  s_mov_b32 s87, 0x20000")
    A("  s_mul_i32 s7, s3, 288")
    A("  v_lshl_add_u32 v1, v0, 3, s7")
    A("  s_mov_b32 exec_lo, -1"); A("  s_mov_b32 exec_hi, 15")
    for w in range(4): A(f"  ds_read_b64 v[{F+2*w}:{F+2*w+1}], v1 offset:{OUTP+2304*w}")
    A("  v_mul_u32_u24 v5, 57, v0"); A("  v_lshrrev_b32 v5, 9, v5")
    A("  v_mul_u32_u24 v6, 9, v5"); A("  v_sub_u32 v6, v0, v6")
    A(f"  v_mul_u32_u24 v5, {INBOX_STRIDE}, v5"); A("  v_lshl_add_u32 v5, v6, 4, v5")
    A("  s_lshl_b32 s7, s5, 5"); A("  s_lshl_b32 s10, s3, 2"); A("  s_add_u32 s7, s7, s10"); A(f"  s_mul_i32 s7, s7, {INBOX_STRIDE}")
    A("  s_mul_i32 s10, s4, 144"); A("  s_add_u32 s7, s7, s10")
    A(f"  v_mov_b32 v{F+9}, {TAG}"); A(f"  v_mov_b32 v{F+11}, {TAG}")
    A("  s_waitcnt lgkmcnt(0)")
    A(f"  v_add_f32 v{F}, v{F}, v{F+2}"); A(f"  v_add_f32 v{F+1}, v{F+1}, v{F+3}")
    A(f"  v_add_f32 v{F+4}, v{F+4}, v{F+6}"); A(f"  v_add_f32 v{F+5}, v{F+5}, v{F+7}")
    A(f"  v_add_f32 v{F+8}, v{F}, v{F+4}"); A(f"  v_add_f32 v{F+10}, v{F+1}, v{F+5}")
    A(f"  buffer_store_dwordx4 v[{F+8}:{F+11}], v5, {WS}, s7 offen sc1")
    A("  s_cmp_lg_u32 s3, 0")
    A("  s_cbranch_scc1 L_fin")
    A("  s_mov_b64 exec, -1")
    A("  v_mul_u32_u24 v5, 144, v3"); A("  v_lshl_add_u32 v5, v4, 4, v5")
    A(f"  s_mul_i32 s7, s6, {INBOX_STRIDE}")
    A("  v_cmp_gt_u32 vcc, 9, v4")
    PD = 16
    for k in range(8): A(f"  s_mov_b64 s[{PD+2*k}:{PD+2*k+1}], vcc")
    A("  s_mov_b32 s80, s34"); A("  s_mov_b32 s81, s35"); A("  s_mov_b32 s82, 1152"); A("  s_mov_b32 s83, 0x20000")
    A("  s_mul_i32 s11, s4, 36")
    A("  v_lshlrev_b32 v1, 2, v4")
    A(f"  buffer_load_dword v10, v1, {B2}, s11 offen")
    A(f"  v_mov_b32 v6, {GATE}"); A("  ds_read_b32 v8, v6")
    A("  s_mov_b32 s88, s38"); A("  s_mov_b32 s89, s39"); A("  s_mov_b32 s90, 9216"); A("  s_mov_b32 s91, 0x20000")
    G = 40
    A("  s_mov_b32 s93, 0")
    A("L_poll:")
    for k in range(8):
        A(f"  s_mov_b64 exec, s[{PD+2*k}:{PD+2*k+1}]")
        A(f"  s_cbranch_execz L_sk{k}")
        A(f"  buffer_load_dwordx4 v[{G+4*k}:{G+4*k+3}], v5, {WS}, s7 offen offset:{576*k} sc1")
        A(f"L_sk{k}:")
    A("  s_waitcnt vmcnt(0)")
    A("  s_mov_b64 s[10:11], 0")
    for k in range(8):
        A(f"  s_mov_b64 exec, s[{PD+2*k}:{PD+2*k+1}]")
        A(f"  v_xor_b32 v{T}, {TAG}, v{G+4*k+1}"); A(f"  v_xor_b32 v{T+1}, {TAG}, v{G+4*k+3}"); A(f"  v_or_b32 v{T}, v{T}, v{T+1}")
        A(f"  v_cmp_ne_u32 s[{PD+2*k}:{PD+2*k+1}], 0, v{T}")
        A(f"  s_and_b64 s[{PD+2*k}:{PD+2*k+1}], s[{PD+2*k}:{PD+2*k+1}], exec")
        A(f"  s_or_b64 s[10:11], s[10:11], s[{PD+2*k}:{PD+2*k+1}]")
    A("  s_cmp_eq_u64 s[10:11], 0")
    A("  s_cbranch_scc1 L_pdone")
    if poll_sleep: A(f"  s_sleep {poll_sleep}")
    A("  s_add_u32 s93, s93, 1"); A(f"  s_cmp_lt_u32 s93, {SPIN_MAX}")
    A("  s_cbranch_scc1 L_poll")
    A("L_pdone:")
    A("  s_mov_b64 exec, -1")
    for k in range(1, 8):
        A(f"  v_add_f32 v{G}, v{G}, v{G+4*k}"); A(f"  v_add_f32 v{G+2}, v{G+2}, v{G+4*k+2}")
    A(f"  v_permlane32_swap_b32 v{G}, v{G+2}")
    A(f"  v_add_f32 v{G}, v{G}, v{G+2}")
    A(f"  v_mov_b32 v{T}, v{G}"); A(f"  v_permlane16_swap_b32 v{G}, v{T}"); A(f"  v_add_f32 v{G}, v{G}, v{T}")
    A(f"  v_mov_b32 v{T}, v{G}"); A(f"  v_permlane32_swap_b32 v{G}, v{T}")
    A("  s_waitcnt lgkmcnt(0)")
    A("  v_sub_f32 v8, 1.0, v8")
    A(f"  v_lshlrev_b32 v{T+1}, 16, v10"); A(f"  v_and_b32 v{T+2}, {sMASK}, v10")
    A(f"  v_fmac_f32 v{G}, v8, v{T+1}"); A(f"  v_fmac_f32 v{T}, v8, v{T+2}")
    A(f"  v_cvt_pk_bf16_f32 v{G}, v{G}, v{T}")
    A("  s_mul_i32 s7, s5, 1152"); A("  s_mul_i32 s12, s4, 36"); A("  s_add_u32 s7, s7, s12")
    A("  s_mov_b64 exec, 0x1ff")
    A(f"  buffer_store_dword v{G}, v1, {OUT}, s7 offen")
    A("L_fin:")
    if stamps:
        A("  s_mov_b64 exec, 1")
        A("  s_memrealtime s[12:13]")
        A("  s_waitcnt lgkmcnt(0) vmcnt(0)")
        A("  s_and_b32 s7, s3, 3"); A("  s_cmp_lg_u32 s7, 0"); A("  s_cbranch_scc1 L_end")
        A("  s_lshl_b32 s7, s2, 8"); A("  s_add_u32 s7, s7, 0x20000000")
        A("  s_lshl_b32 s10, s3, 5"); A("  s_add_u32 s7, s7, s10")
        A("  v_mov_b32 v1, 0")
        A("  v_mov_b32 v4, s98"); A("  v_mov_b32 v5, s99"); A("  v_mov_b32 v6, s12"); A("  v_mov_b32 v7, s13")
        A(f"  buffer_store_dwordx4 v[4:7], v1, {WS}, s7 offen")
        A("  s_getreg_b32 s13, hwreg(HW_REG_XCC_ID)")
        A("  v_mov_b32 v8, s13"); A("  v_mov_b32 v9, 0"); A("  v_mov_b32 v10, s100"); A("  v_mov_b32 v11, s101")
        A(f"  buffer_store_dwordx4 v[8:11], v1, {WS}, s7 offen offset:16")
        A("  s_cmp_lg_u32 s3, 0"); A("  s_cbranch_scc1 L_sth")
        for i, r in enumerate(STR):
            A(f"  v_mov_b32 v12, s{r}"); A(f"  v_mov_b32 v13, s{r+1}")
            A(f"  buffer_store_dwordx2 v[12:13], v1, {WS}, s7 offen offset:{32+8*i}")
            A("  s_nop 1")
        A("  s_branch L_end")
        A("L_sth:")
        for i, r in enumerate(STH[:4]):
            A(f"  v_mov_b32 v12, s{r}"); A(f"  v_mov_b32 v13, s{r+1}")
            A(f"  buffer_store_dwordx2 v[12:13], v1, {WS}, s7 offen offset:{32+8*i}")
            A("  s_nop 1")
    A("L_end:")
    A("  s_endpgm")
    A('.section .rodata,"a"'); A(".p2align 6"); A(f".amdhsa_kernel {KN}")
    A("  .amdhsa_next_free_vgpr 256"); A("  .amdhsa_next_free_sgpr 102"); A("  .amdhsa_accum_offset 256")
    A("  .amdhsa_group_segment_fixed_size 0"); A("  .amdhsa_kernarg_size 112"); A("  .amdhsa_user_sgpr_count 2")
    A("  .amdhsa_user_sgpr_kernarg_segment_ptr 1"); A("  .amdhsa_system_sgpr_workgroup_id_x 1"); A(".end_amdhsa_kernel")
    return A.fix()

if __name__ == "__main__":
    import argparse
    ap = argparse.ArgumentParser()
    ap.add_argument("-o", default="k.s")
    for n, d in [("R", 5), ("HRW", 2), ("H2", 2), ("HWO", 4), ("RB", 0), ("NB", 0), ("EK", 1), ("EBAR", 4), ("poll_sleep", 2)]:
        ap.add_argument("--" + n, type=int, default=d)
    ap.add_argument("--stamps", action="store_true"); ap.add_argument("--dbg", action="store_true"); ap.add_argument("--prio", action="store_true"); ap.add_argument("--norot", action="store_true"); ap.add_argument("--hfake", action="store_true"); ap.add_argument("--skiph", action="store_true")
    ap.add_argument("--wflags", default=""); ap.add_argument("--kflags", default="nt"); ap.add_argument("--vflags", default="nt")
    a = ap.parse_args()
    kw = vars(a).copy(); o = kw.pop("o"); kw["rot"] = not kw.pop("norot")
    if kw["RB"] == 0: kw["RB"] = None
    open(o, "w").write(gen(**kw))
    print("wrote", o)
```

```python
import sys, math, struct
from asmlib import Asm

KN = "gated_mix__mha_block_cached__mixer_channel_mlp__decode_kernel"
HEADER = open("gated_mix__mha_block_cached__mixer_channel_mlp__decode.s.ref").read().split("; Override launch")[0]
f2u = lambda x: "0x%08x" % struct.unpack("<I", struct.pack("<f", x))[0]

QP   = 0
OP   = 2048
SC   = 4096
ML   = SC + 4 * 4096 + 256
GATE = ML + 32
HCNT = GATE + 4
PRG  = ML + 48
YL   = ML + 96
HP   = YL + 2560
OUTP = HP + 6912
LDS_TOTAL = OUTP + 9216
TAG = 0x5AFE1234
SPIN_MAX = 100000
EPOCH_OFF = 0x300000
PROG_OFF = 0x200000
INBOX_STRIDE = 5120

class Q:
    def __init__(self, items=None): self.q = list(items or [])
    def issue(self, x): self.q.append(x)
    def wait_for(self, x):
        if x not in self.q: return None
        i = self.q.index(x)
        n = len(self.q) - 1 - i
        self.q = self.q[i + 1:]
        return n

def gen(R=5, kflags="nt", vflags="nt", wflags="", stamps=False, dbg=False, HRW=2, H2=2, HWO=4, RB=None, NB=0, EK=1, EBAR=4,
        poll_sleep=2, prio=False, rot=True, hfake=False, skiph=False, touch=0, map2=0, noproto=0, adapt=0, theta=1, csleep=8, pstop=28):
    A = Asm()
    S = 16
    NPRE = 32
    STR = [56, 58, 60, 62, 64, 66, 68, 70, 72]
    STH = [44, 46, 56, 58, 8]
    def stamp(regs, i):
        if stamps:
            A(f"  s_memrealtime s[{regs[i]}:{regs[i]+1}]"); A("  s_waitcnt lgkmcnt(0)")
    A(HEADER.rstrip())
    A(f"; @launch grid=(256,1,1) block=(512,1,1) lds={LDS_TOTAL}")
    A('.amdgcn_target "amdgcn-amd-amdhsa--gfx950"')
    A(".text"); A(f".globl {KN}"); A(".p2align 8"); A(f".type {KN},@function"); A(f"{KN}:")
    KV = "s[44:47]"; WQ = "s[48:51]"; XA = "s[52:55]"; GW = "s[60:63]"; W1 = "s[64:67]"
    B1 = "s[68:71]"; W2 = "s[72:75]"; WO = "s[76:79]"; B2 = "s[80:83]"; WS = "s[84:87]"; OUT = "s[88:91]"
    sMASK = "s92"; sM2 = "s[94:95]"; sM1 = "s[96:97]"
    ACC = 8; T = 16
    RING = 24; PRE = 88; SCR = 216; Qr = 232
    vP, vPn, vSC, vRG = "v236", "v237", "v238", "v239"
    AV = 240
    vMX, vLS, vNM = "v248", "v249", "v250"
    WT = 24; HRING = 168; HS = 200; OA = 216; HX = 232
    vG_, v1mG, vZ = "v246", "v247", "v248"
    ring = lambda s: f"v[{RING+4*(s%S)}:{RING+4*(s%S)+3}]"
    pre = lambda t: f"v[{PRE+4*t}:{PRE+4*t+3}]"
    wt = lambda i: f"v[{WT+4*i}:{WT+4*i+3}]"
    ktile = lambda t: pre(t) if t < NPRE else ring(t)
    t0, t1 = f"v{T}", f"v{T+1}"

    A("  s_cmp_ge_u32 s2, 256")
    A("  s_cbranch_scc1 L_end")
    A("  s_load_dwordx16 s[16:31], s[0:1], 0")
    A("  s_load_dwordx8 s[32:39], s[0:1], 64")
    A("  s_load_dwordx4 s[40:43], s[0:1], 96")
    if stamps: A("  s_memrealtime s[98:99]")
    A("  v_lshrrev_b32 v1, 6, v0")
    A("  v_and_b32 v0, 63, v0")
    A("  v_lshlrev_b32 v2, 4, v0")
    A("  v_readfirstlane_b32 s3, v1")
    A("  s_and_b32 s4, s2, 7")
    A("  s_lshl_b32 s4, s4, 2")
    if map2:
        A("  s_bfe_u32 s7, s2, 0x20006")
        A("  s_or_b32 s4, s4, s7")
        A("  s_bfe_u32 s5, s2, 0x30003")
    else:
        A("  s_bfe_u32 s7, s2, 0x20003")
        A("  s_or_b32 s4, s4, s7")
        A("  s_lshr_b32 s5, s2, 5")
    A("  s_lshl_b32 s6, s5, 5")
    A("  s_or_b32 s6, s6, s4")
    A("  s_lshl_b32 s9, s6, 20")
    A("  s_lshl_b32 s13, s3, 10")
    A("  s_mov_b32 s46, 0x100000"); A("  s_mov_b32 s47, 0x20000")
    A("  v_lshrrev_b32 v3, 4, v0")
    A("  v_and_b32 v4, 15, v0")
    A("  s_mov_b32 s92, 0xffff0000")
    A("  s_mov_b32 s8, s13")
    A("  s_cmp_ge_u32 s3, 4")
    A("  s_cbranch_scc1 L_helper")
    q = Q()
    def kissue(t, flags):
        A(f"  buffer_load_dwordx4 {ktile(t) if t < 48 else ring(t)}, v2, {KV}, s8 offen {flags}")
        A("  s_addk_i32 s8, 4096")
        q.issue(t)
    def kwait(t):
        n = q.wait_for(t)
        if n is not None: A(f"  s_waitcnt vmcnt({n})")
    A("  s_waitcnt lgkmcnt(0)")
    A("  s_add_u32 s44, s18, s9"); A("  s_addc_u32 s45, s19, 0")
    for t in range(R): kissue(t, kflags)
    A("  s_lshl_b32 s7, s5, 7"); A(f"  s_add_u32 s7, s7, {EPOCH_OFF}")
    A("  s_load_dword s26, s[42:43], s7")
    if prio: A("  s_setprio 2")
    A("  s_add_u32 s14, s20, s9"); A("  s_addc_u32 s15, s21, 0")
    if touch & 1:
        A("  v_lshlrev_b32 v1, 14, v0"); A("  s_lshl_b32 s7, s3, 12"); A("  v_add_u32 v1, s7, v1")
        A("  global_load_dword v255, v1, s[14:15] nt")
        q.issue("touchV")
    A("  v_and_b32 v1, 2, v0"); A(f"  v_cmp_ne_u32 {sM2}, 0, v1")
    A("  v_and_b32 v1, 1, v0"); A(f"  v_cmp_ne_u32 {sM1}, 0, v1")
    A("  v_lshlrev_b32 v5, 5, v4"); A("  v_lshl_add_u32 v5, v3, 3, v5")
    A("  s_lshl_b32 s7, s3, 9"); A(f"  v_add_u32 {vRG}, s7, v5")
    A("  s_lshl_b32 s7, s3, 12"); A(f"  v_lshl_add_u32 {vSC}, v0, 2, s7")
    for k in range(8): A(f"  v_mov_b32 v{AV+k}, 0")
    A(f"  v_mov_b32 {vMX}, 0xff800000"); A(f"  v_mov_b32 {vLS}, 0")
    last_paced = 47 - EBAR
    for t in range(last_paced - R + 1):
        kwait(t); kissue(t + R, kflags)
    stamp(STR, 4)
    A("  s_barrier")
    for t in range(last_paced + 1, 48): kissue(t, kflags)
    A("  v_lshlrev_b32 v5, 5, v4")
    for w in range(2):
        A(f"  ds_read_b128 v[{SCR+8*w}:{SCR+8*w+3}], v5 offset:{QP+512*w}")
        A(f"  ds_read_b128 v[{SCR+8*w+4}:{SCR+8*w+7}], v5 offset:{QP+512*w+16}")
    A(f"  ds_read_b128 v[{ACC}:{ACC+3}], v5 offset:{QP+1024}")
    A(f"  ds_read_b128 v[{ACC+4}:{ACC+7}], v5 offset:{QP+1024+16}")
    A(f"  ds_read_b128 v[{T}:{T+3}], v5 offset:{QP+1536}")
    A(f"  ds_read_b128 v[{T+4}:{T+7}], v5 offset:{QP+1536+16}")
    A("  s_waitcnt lgkmcnt(0)")
    for k in range(8):
        A(f"  v_add_f32 v{SCR+k}, v{SCR+k}, v{SCR+8+k}")
        A(f"  v_add_f32 v{ACC+k}, v{ACC+k}, v{T+k}")
    for k in range(8): A(f"  v_add_f32 v{SCR+k}, v{SCR+k}, v{ACC+k}")
    for k in range(4): A(f"  v_cvt_pk_bf16_f32 v{Qr+k}, v{SCR+2*k}, v{SCR+2*k+1}")
    if dbg:
        A("  s_cmp_lg_u32 s3, 0"); A("  s_cbranch_scc1 L_dq")
        A("  s_mov_b32 s84, s42"); A("  s_mov_b32 s85, s43"); A("  s_mov_b32 s86, 0x40000000"); A("  s_mov_b32 s87, 0x20000")
        A("  s_lshl_b32 s7, s6, 8"); A("  s_add_u32 s7, s7, 0x30000000")
        A("  v_lshlrev_b32 v1, 4, v4")
        A(f"  buffer_store_dwordx4 v[{Qr}:{Qr+3}], v1, {WS}, s7 offen")
        A("  s_waitcnt vmcnt(0)")
        A("L_dq:")
    stamp(STR, 0)
    a = lambda i: f"v{SCR+i}"
    def kdots(u, r):
        for k in range(4):
            c = "0" if k == 0 else a(u)
            A(f"  v_dot2_f32_bf16 {a(u)}, v{r+k}, v{Qr+k}, {c}")
    def kreduce():
        for i in range(8):
            A(f"  v_add_f32_dpp {a(i)}, {a(i)}, {a(i)} row_ror:8 row_mask:0xf bank_mask:0x3")
            A(f"  v_add_f32_dpp {a(i)}, {a(i+8)}, {a(i+8)} row_ror:8 row_mask:0xf bank_mask:0xc")
        for i in range(4):
            A(f"  v_add_f32_dpp {a(i)}, {a(i)}, {a(i)} row_shl:4 row_mask:0xf bank_mask:0x5")
            A(f"  v_add_f32_dpp {a(i)}, {a(i+4)}, {a(i+4)} row_shr:4 row_mask:0xf bank_mask:0xa")
        for i in range(2):
            A(f"  v_cndmask_b32 v{T+i}, {a(i)}, {a(i+2)}, {sM2}")
            A(f"  v_cndmask_b32 v{T+2+i}, {a(i+2)}, {a(i)}, {sM2}")
        for i in range(2):
            A(f"  v_add_f32_dpp v{T+i}, v{T+2+i}, v{T+i} quad_perm:[2,3,0,1] row_mask:0xf bank_mask:0xf")
        A(f"  v_cndmask_b32 v{T+4}, v{T}, v{T+1}, {sM1}")
        A(f"  v_cndmask_b32 v{T+5}, v{T+1}, v{T}, {sM1}")
        A(f"  v_add_f32_dpp v{T+4}, v{T+5}, v{T+4} quad_perm:[1,0,3,2] row_mask:0xf bank_mask:0xf")
        A(f"  ds_write_b32 {vSC}, v{T+4} offset:{SC}")
        A(f"  v_max_f32 {vMX}, {vMX}, v{T+4}")
        A(f"  v_add_u32 {vSC}, 256, {vSC}")
    for blk in range(2):
        for u in range(16): kdots(u, PRE + 4 * (16 * blk + u))
        kreduce()
    nxt = 48
    for u in range(16):
        t = 32 + u
        kwait(t)
        want = t + R + (EK if u == 15 else 0)
        while nxt <= want:
            kissue(nxt, kflags); nxt += 1
        kdots(u, RING + 4 * (u % S))
    kreduce()
    entry_state = [x - 48 for x in q.q]
    A("  s_mov_b32 s12, 3")
    A("L_kloop:")
    if stamps:
        A("  s_cmp_lg_u32 s12, 9"); A("  s_cbranch_scc1 L_nomid")
        A(f"  s_memrealtime s[{STR[5]}:{STR[5]+1}]"); A("  s_waitcnt lgkmcnt(0)")
        A("L_nomid:")
    q = Q(entry_state); nxt = R + EK
    def kissue2(t, flags):
        if t == 16:
            A("  s_cmp_eq_u32 s12, 15")
            A("  s_cselect_b32 s44, s14, s44"); A("  s_cselect_b32 s45, s15, s45"); A("  s_cselect_b32 s8, s13, s8")
        A(f"  buffer_load_dwordx4 {ring(t)}, v2, {KV}, s8 offen {flags}")
        A("  s_addk_i32 s8, 4096")
        q.issue(t)
    for u in range(16):
        kwait(u)
        want = u + R + (EK if u == 15 else 0)
        while nxt <= want:
            kissue2(nxt, kflags); nxt += 1
        kdots(u, RING + 4 * (u % S))
    kreduce()
    assert [x - 16 for x in q.q] == entry_state, (q.q, entry_state)
    A("  s_add_u32 s12, s12, 1")
    A("  s_cmp_lt_u32 s12, 16")
    A("  s_cbranch_scc1 L_kloop")
    stamp(STR, 1)
    A(f"  v_subrev_u32 {vSC}, 4096, {vSC}")
    A(f"  ds_read_b32 {vPn}, {vSC} offset:{SC}")
    def allreduce(op, v, tmp):
        for sh in (8, 4, 2, 1):
            A(f"  {op}_dpp {v}, {v}, {v} row_ror:{sh} row_mask:0xf bank_mask:0xf")
        A(f"  v_mov_b32 {tmp}, {v}"); A(f"  v_permlane16_swap_b32 {v}, {tmp}"); A(f"  {op} {v}, {v}, {tmp}")
        A(f"  v_mov_b32 {tmp}, {v}"); A(f"  v_permlane32_swap_b32 {v}, {tmp}"); A(f"  {op} {v}, {v}, {tmp}")
    allreduce("v_max_f32", vMX, t1)
    SC2 = (128 ** -0.5) * math.log2(math.e)
    A(f"  s_mov_b32 s7, {f2u(SC2)}")
    A(f"  v_mul_f32 {vMX}, s7, {vMX}")
    if dbg:
        A("  s_mov_b32 s84, s42"); A("  s_mov_b32 s85, s43"); A("  s_mov_b32 s86, 0x40000000"); A("  s_mov_b32 s87, 0x20000")
        A("  s_lshl_b32 s10, s6, 2"); A("  s_add_u32 s10, s10, s3"); A("  s_lshl_b32 s10, s10, 12"); A("  s_add_u32 s10, s10, 0x31000000")
        A("  v_lshlrev_b32 v1, 2, v0")
        for i in range(16): A(f"  ds_read_b32 {a(i)}, {vSC} offset:{SC+256*i}")
        A("  s_waitcnt lgkmcnt(0)")
        for i in range(16): A(f"  buffer_store_dword {a(i)}, v1, {WS}, s10 offen offset:{256*i}")
        A("  s_waitcnt vmcnt(0)")
    A("  s_waitcnt lgkmcnt(0)")
    A(f"  v_fma_f32 {vP}, {vPn}, s7, -{vMX}")
    A(f"  v_exp_f32 {vP}, {vP}")
    A("  s_mov_b32 s12, 0")
    stamp(STR, 2)
    def unpack(r):
        for k in range(4):
            A(f"  v_lshlrev_b32 v{T+2*k}, 16, v{r+k}")
            A(f"  v_and_b32 v{T+2*k+1}, {sMASK}, v{r+k}")
    def vloop(Rx, state, extra_first, lab, nend):
        D = adapt if adapt else Rx
        qq = Q(state)
        n = max(state) + 1
        while n < D:
            A(f"  buffer_load_dwordx4 {ring(n)}, v2, {KV}, s8 offen {vflags}"); A("  s_addk_i32 s8, 4096"); qq.issue(n); n += 1
        steady = list(range(D))
        cnt = [0]
        def body(qq, n):
            cnt[0] += 1
            A(f"  v_add_u32 {vSC}, 256, {vSC}")
            A(f"  ds_read_b32 {vPn}, {vSC} offset:{SC}")
            if adapt:
                A(f"  ds_read_b32 v251, v252 offset:{PRG+16}")
                A("  s_lshl_b32 s10, s12, 1"); A("  v_mov_b32 v253, s10")
                A(f"  ds_write_b32 v254, v253 offset:{PRG}")
            A(f"  v_add_f32 {vLS}, {vLS}, {vP}")
            for u in range(16):
                w = qq.wait_for(u)
                if w is not None: A(f"  s_waitcnt vmcnt({w})")
                while n <= u + D:
                    if adapt:
                        A(f"  s_cbranch_vccnz {lab}_h{cnt[0]}_{u}")
                        A(f"  s_waitcnt vmcnt({Rx-1})")
                        A(f"{lab}_h{cnt[0]}_{u}:")
                    A(f"  buffer_load_dwordx4 {ring(n)}, v2, {KV}, s8 offen {vflags}"); A("  s_addk_i32 s8, 4096"); qq.issue(n); n += 1
                unpack(RING + 4 * (u % S))
                for k in range(8):
                    A(f"  v_fmac_f32_dpp v{AV+k}, {vP}, v{T+k} row_newbcast:{u} row_mask:0xf bank_mask:0xf")
                if u == 8:
                    A("  s_waitcnt lgkmcnt(0)")
                    A(f"  v_fma_f32 {vPn}, {vPn}, s7, -{vMX}")
                    A(f"  v_exp_f32 {vPn}, {vPn}")
                    if adapt:
                        A("  v_readfirstlane_b32 s10, v251")
                        A("  v_add_u32 v253, 1, v253")
                        A(f"  ds_write_b32 v254, v253 offset:{PRG}")
                        A("  s_cmp_lg_u32 s10, 0")
                        A("  s_cselect_b64 vcc, -1, 0")
            A(f"  v_mov_b32 {vP}, {vPn}")
            A("  s_add_u32 s12, s12, 1")
            return [x - 16 for x in qq.q]
        if qq.q != steady:
            st = body(qq, n)
            assert st == steady, (st, steady)
        A(f"{lab}:")
        st = body(Q(steady), D)
        assert st == steady
        A(f"  s_cmp_lt_u32 s12, {nend}")
        A(f"  s_cbranch_scc1 {lab}")
        return steady
    if adapt:
        A("  s_mov_b64 vcc, 0")
        A("  v_mov_b32 v252, 0"); A("  s_lshl_b32 s10, s3, 2"); A("  v_mov_b32 v254, s10")
    st = entry_state
    if RB is None or NB == 0:
        vloop(R, st, 0, "L_vloopA", 16)
    else:
        st = vloop(R, st, 0, "L_vloopA", 16 - NB)
        vloop(RB, st, 0, "L_vloopB", 16)
    stamp(STR, 3)
    def reduce_g(a_):
        for j in range(4): A(f"  v_permlane32_swap_b32 v{a_+j}, v{a_+j+4}")
        for j in range(4): A(f"  v_add_f32 v{a_+j}, v{a_+j}, v{a_+j+4}")
        for j in range(2): A(f"  v_permlane16_swap_b32 v{a_+j}, v{a_+j+2}")
        for j in range(2): A(f"  v_add_f32 v{a_+j}, v{a_+j}, v{a_+j+2}")
    reduce_g(AV)
    A(f"  ds_write_b64 {vRG}, v[{AV}:{AV+1}] offset:{OP}")
    allreduce("v_add_f32", vLS, t1)
    A(f"  v_mov_b32 v{T+2}, {vMX}"); A(f"  v_mov_b32 v{T+3}, {vLS}")
    A("  s_lshl_b32 s7, s3, 3"); A("  v_mov_b32 v1, s7")
    A(f"  ds_write_b64 v1, v[{T+2}:{T+3}] offset:{ML}")
    A("  s_waitcnt lgkmcnt(0)")
    A("  s_barrier")
    A("  s_barrier")
    A("  s_branch L_final")

    A("L_helper:")
    A("  s_sub_u32 s12, s3, 4")
    A("  s_mul_i32 s7, s5, 1152")
    A("  s_mul_i32 s14, s5, 9"); A("  s_lshr_b32 s14, s14, 1")
    if not rot: A("  s_mov_b32 s14, 0")
    for k in range(3):
        A(f"  s_add_u32 s15, s14, {16*k}")
        A(f"  v_add_u32 v{6+k}, s15, v4")
        A(f"  v_subrev_u32 v5, 36, v{6+k}")
        A(f"  v_min_u32 v{6+k}, v{6+k}, v5")
        A(f"  v_lshlrev_b32 v{6+k}, 3, v{6+k}")
        A(f"  v_lshl_add_u32 v{6+k}, v3, 1, v{6+k}")
    A("  v_lshlrev_b32 v1, 4, v4"); A("  v_lshl_add_u32 v1, v3, 13, v1")
    A(f"  s_mul_i32 s10, s12, {144*8192}"); A("  s_lshl_b32 s11, s4, 8"); A("  s_add_u32 s10, s10, s11")
    A(f"  s_add_u32 s15, s10, {36*32768}")
    A("  s_mov_b32 s9, s10")
    A("  s_lshl_b32 s14, s14, 15"); A("  s_add_u32 s10, s10, s14")
    A("  s_mul_i32 s11, s12, 288")
    A(f"  s_mov_b32 s50, {576*8192}"); A("  s_mov_b32 s51, 0x20000")
    A("  s_mov_b32 s54, 1152"); A("  s_mov_b32 s55, 0x20000")
    A("  s_waitcnt lgkmcnt(0)")
    A("  s_add_u32 s52, s16, s7"); A("  s_addc_u32 s53, s17, 0")
    A("  s_lshl_b32 s7, s5, 7"); A(f"  s_add_u32 s7, s7, {EPOCH_OFF}")
    A("  s_load_dword s26, s[42:43], s7")
    A("  s_mov_b32 s48, s22"); A("  s_mov_b32 s49, s23")
    for k in range(3): A(f"  buffer_load_ushort v{6+k}, v{6+k}, {XA}, s11 offen")
    if touch & 2:
        A("  v_mul_u32_u24 v255, 82944, v0")
        A("  s_mul_i32 s7, s4, 288"); A("  v_add_u32 v255, s7, v255")
        A("  global_load_dword v254, v255, s[28:29]")
        A("  v_mul_u32_u24 v255, 2592, v0"); A(f"  s_mul_i32 s7, s4, {144*1152}"); A("  v_add_u32 v255, s7, v255")
        A("  global_load_dword v253, v255, s[32:33]")
        A("  v_mul_u32_u24 v255, 2304, v0"); A(f"  s_mul_i32 s7, s4, {128*1152}"); A("  v_add_u32 v255, s7, v255")
        A("  global_load_dword v252, v255, s[24:25]")
    for i in range(36):
        A(f"  buffer_load_dwordx4 {wt(i)}, v1, {WQ}, s10 offen {wflags}")
        if i < 35:
            A("  s_add_u32 s10, s10, 32768")
            A("  s_cmp_eq_u32 s10, s15"); A("  s_cselect_b32 s10, s9, s10")
    A("  s_mov_b32 s60, s36"); A("  s_mov_b32 s61, s37"); A("  s_mov_b32 s62, 1152"); A("  s_mov_b32 s63, 0x20000")
    A("  s_mov_b32 s68, s30"); A("  s_mov_b32 s69, s31"); A("  s_mov_b32 s70, 9216"); A("  s_mov_b32 s71, 0x20000")
    A("  v_lshlrev_b32 v1, 2, v0")
    for k in range(5): A(f"  buffer_load_dword v{HX+k}, v1, {XA}, 0 offen offset:{256*k}")
    for k in range(5): A(f"  buffer_load_dword v{HX+5+k}, v1, {GW}, 0 offen offset:{256*k}")
    A("  s_mul_i32 s10, s4, 288"); A("  s_mul_i32 s11, s12, 72"); A("  s_add_u32 s10, s10, s11")
    A("  v_lshlrev_b32 v1, 1, v0")
    A(f"  buffer_load_ushort v{HX+10}, v1, {B1}, s10 offen")
    NYOUNG = 11
    A("  s_mov_b32 s76, s24"); A("  s_mov_b32 s77, s25"); A(f"  s_mov_b32 s78, {4096*1152}"); A("  s_mov_b32 s79, 0x20000")
    A("  s_mov_b32 s84, s42"); A("  s_mov_b32 s85, s43"); A("  s_mov_b32 s86, 0x40000000"); A("  s_mov_b32 s87, 0x20000")
    for k in range(16): A(f"  v_mov_b32 v{OA+k}, 0")
    A(f"  s_waitcnt vmcnt({36+NYOUNG + (3 if touch & 2 else 0)})")
    stamp(STH, 3)
    for k in range(3): A(f"  v_lshlrev_b32 v{6+k}, 16, v{6+k}")
    QA = HS
    for i in range(36):
        A(f"  s_waitcnt vmcnt({35-i+NYOUNG})")
        unpack(WT + 4 * i)
        src = f"v{6 + i // 16}"
        for k in range(8):
            op = "v_mul_f32_dpp" if i == 0 else "v_fmac_f32_dpp"
            A(f"  {op} v{QA+k}, {src}, v{T+k} row_newbcast:{i%16} row_mask:0xf bank_mask:0xf")
    reduce_g(QA)
    A("  v_lshlrev_b32 v5, 5, v4"); A("  v_lshl_add_u32 v5, v3, 3, v5")
    A("  s_lshl_b32 s7, s12, 9"); A("  v_add_u32 v5, s7, v5")
    A(f"  ds_write_b64 v5, v[{QA}:{QA+1}] offset:{QP}")
    A("  v_mov_b32 v1, 0"); A(f"  v_mov_b32 v5, {HCNT}")
    A("  ds_write_b32 v5, v1")
    if adapt:
        A(f"  v_mov_b32 v5, {PRG}")
        for k in range(5): A(f"  ds_write_b32 v5, v1 offset:{4*k}")
    A("  s_waitcnt lgkmcnt(0)")
    stamp(STH, 2)
    A("  s_barrier")
    X = HS
    A("  s_waitcnt vmcnt(0)")
    for k in range(5):
        A(f"  v_lshlrev_b32 v{X+2*k}, 16, v{HX+k}")
        A(f"  v_and_b32 v{X+2*k+1}, {sMASK}, v{HX+k}")
    A(f"  v_add_f32 {t0}, v{X}, v{X+1}")
    for k in range(2, 10): A(f"  v_add_f32 {t0}, {t0}, v{X+k}")
    allreduce("v_add_f32", t0, t1)
    A(f"  v_mul_f32 {t0}, {f2u(1.0/576)}, {t0}")
    for k in range(10): A(f"  v_sub_f32 v{X+k}, v{X+k}, {t0}")
    A("  v_cmp_gt_u32 vcc, 32, v0")
    A(f"  v_cndmask_b32 v{X+8}, 0, v{X+8}, vcc"); A(f"  v_cndmask_b32 v{X+9}, 0, v{X+9}, vcc")
    A(f"  v_mul_f32 {t0}, v{X}, v{X}")
    for k in range(1, 10): A(f"  v_fmac_f32 {t0}, v{X+k}, v{X+k}")
    allreduce("v_add_f32", t0, t1)
    A(f"  v_mov_b32 {t1}, {f2u(1e-5)}")
    A(f"  v_fmac_f32 {t1}, {f2u(1.0/576)}, {t0}")
    A(f"  v_rsq_f32 {t1}, {t1}")
    for k in range(10): A(f"  v_mul_f32 v{X+k}, v{X+k}, {t1}")
    A("  v_lshlrev_b32 v1, 3, v0")
    for k in range(5): A(f"  ds_write_b64 v1, v[{X+2*k}:{X+2*k+1}] offset:{YL+512*k}")
    A(f"  v_dot2_f32_bf16 {t0}, v{HX}, v{HX+5}, 0")
    for k in range(1, 5): A(f"  v_dot2_f32_bf16 {t0}, v{HX+k}, v{HX+5+k}, {t0}")
    allreduce("v_add_f32", t0, t1)
    A(f"  v_mul_f32 {t0}, {f2u(-math.log2(math.e))}, {t0}")
    A(f"  v_exp_f32 {t0}, {t0}")
    A(f"  v_add_f32 {t0}, 1.0, {t0}")
    A(f"  v_rcp_f32 {vG_}, {t0}")
    A(f"  v_sub_f32 {v1mG}, 1.0, {vG_}")
    A(f"  v_mov_b32 v1, {GATE}")
    A(f"  ds_write_b32 v1, {vG_}")
    if skiph: A("  s_branch L_rdy0")
    A("  v_mul_u32_u24 v5, 57, v0"); A("  v_lshrrev_b32 v5, 10, v5")
    A("  v_mul_u32_u24 v6, 18, v5"); A("  v_sub_u32 v6, v0, v6")
    A("  v_mul_u32_u24 v7, 9216, v5"); A("  v_lshl_add_u32 v7, v6, 4, v7")
    A("  s_mov_b32 s64, s28"); A("  s_mov_b32 s65, s29"); A(f"  s_mov_b32 s66, {576*9216}"); A("  s_mov_b32 s67, 0x20000")
    A(f"  s_mul_i32 s10, s12, {144*9216}"); A("  s_mul_i32 s11, s4, 288"); A("  s_add_u32 s10, s10, s11")
    A("  s_mul_i32 s11, s12, 576")
    A("  v_lshl_add_u32 v1, v5, 2, s11")
    hring = lambda s: f"v[{HRING+4*s}:{HRING+4*s+3}]"
    for u in range(HRW):
        A(f"  buffer_load_dwordx4 {hring(u)}, v7, {W1}, s10 offen {wflags}")
        A("  s_add_u32 s10, s10, %d" % (0 if hfake else 27648))
    for k in range(8): A(f"  v_mov_b32 v{ACC+k}, 0")
    A("  s_mov_b32 s11, 0")
    A("  s_waitcnt lgkmcnt(0)")
    A("L_w1:")
    for u in range(HRW): A(f"  ds_read_b32 v{HS+u}, v1 offset:{YL+12*u}")
    A(f"  v_add_u32 v1, {12*HRW}, v1")
    A(f"  s_cmp_eq_u32 s11, {48//HRW-1}")
    A("  s_cselect_b32 s10, 0x40000000, s10")
    A("  s_waitcnt lgkmcnt(0)")
    for u in range(HRW):
        A(f"  s_waitcnt vmcnt({HRW-1})")
        unpack(HRING + 4 * u)
        A(f"  buffer_load_dwordx4 {hring(u)}, v7, {W1}, s10 offen {wflags}")
        A("  s_add_u32 s10, s10, %d" % (0 if hfake else 27648))
        for k in range(8): A(f"  v_fmac_f32 v{ACC+k}, v{HS+u}, v{T+k}")
    A("  s_add_u32 s11, s11, 1")
    A(f"  s_cmp_lt_u32 s11, {48//HRW}")
    A("  s_cbranch_scc1 L_w1")
    stamp(STH, 0)
    A("  s_mul_i32 s11, s12, 3")
    A("  v_add_u32 v1, s11, v5"); A("  v_mul_u32_u24 v1, 576, v1"); A("  v_lshl_add_u32 v1, v6, 5, v1")
    A("  v_cmp_gt_u32 vcc, 54, v0")
    A("  s_and_saveexec_b64 s[10:11], vcc")
    A(f"  ds_write_b128 v1, v[{ACC}:{ACC+3}] offset:{HP}")
    A(f"  ds_write_b128 v1, v[{ACC+4}:{ACC+7}] offset:{HP+16}")
    A("  s_mov_b64 exec, 1")
    A(f"  v_mov_b32 v1, {HCNT}"); A("  v_mov_b32 v5, 1")
    A("  ds_add_u32 v1, v5")
    A("  s_mov_b64 exec, -1")
    A(f"  v_mov_b32 v1, {HCNT}")
    A("  s_mov_b32 s93, 0")
    A("L_hspin:")
    A("  ds_read_b32 v5, v1")
    A("  s_waitcnt lgkmcnt(0)")
    A("  v_readfirstlane_b32 s10, v5")
    A("  s_cmp_ge_u32 s10, 4")
    A("  s_cbranch_scc1 L_hgo")
    A("  s_sleep 4")
    A("  s_add_u32 s93, s93, 1"); A(f"  s_cmp_lt_u32 s93, {SPIN_MAX}")
    A("  s_cbranch_scc1 L_hspin")
    A("L_hgo:")
    A("  s_mul_i32 s11, s12, 144")
    A("  v_min_u32 v1, 35, v0")
    A("  v_lshl_add_u32 v1, v1, 2, s11")
    for k in range(12): A(f"  ds_read_b32 v{HS+k}, v1 offset:{HP+576*k}")
    A(f"  v_lshlrev_b32 {t0}, 16, v{HX+10}")
    A("  s_waitcnt lgkmcnt(0)")
    for k in range(12): A(f"  v_add_f32 {t0}, {t0}, v{HS+k}")
    k0 = math.sqrt(2 / math.pi)
    A(f"  v_mul_f32 {t1}, {t0}, {t0}")
    A(f"  v_mov_b32 v{T+2}, {f2u(-2*k0*math.log2(math.e))}")
    A(f"  v_fmac_f32 v{T+2}, {f2u(-2*k0*0.044715*math.log2(math.e))}, {t1}")
    A(f"  v_mul_f32 v{T+2}, v{T+2}, {t0}")
    A(f"  v_exp_f32 v{T+2}, v{T+2}")
    A(f"  v_add_f32 v{T+2}, 1.0, v{T+2}")
    A(f"  v_rcp_f32 v{T+2}, v{T+2}")
    A(f"  v_mul_f32 {t0}, {t0}, v{T+2}")
    A(f"  v_mul_f32 {t0}, {v1mG}, {t0}")
    A("  v_cmp_gt_u32 vcc, 36, v0")
    A(f"  v_cndmask_b32 {vZ}, 0, {t0}, vcc")
    if dbg:
        A("  s_lshl_b32 s7, s6, 2"); A("  s_add_u32 s7, s7, s12"); A("  s_lshl_b32 s7, s7, 8"); A("  s_add_u32 s7, s7, 0x32000000")
        A("  v_lshlrev_b32 v1, 2, v0")
        A(f"  buffer_store_dword {vZ}, v1, {WS}, s7 offen")
        A("  s_waitcnt vmcnt(0)")
    A("  s_mul_i32 s10, s4, 144"); A("  s_mul_i32 s11, s12, 36"); A("  s_add_u32 s10, s10, s11"); A("  s_mul_i32 s10, s10, 1152")
    A("  s_add_u32 s72, s32, s10"); A("  s_addc_u32 s73, s33, 0"); A(f"  s_mov_b32 s74, {36*1152}"); A("  s_mov_b32 s75, 0x20000")
    A("  s_mov_b32 s10, 0")
    for u in range(H2):
        A(f"  buffer_load_dwordx4 {hring(u)}, v2, {W2}, s10 offen {wflags}")
        A("  s_addk_i32 s10, %d" % (0 if hfake else 1152))
    A("  s_mov_b32 s11, 0")
    A("L_w2:")
    for u in range(H2):
        A(f"  v_readlane_b32 s7, {vZ}, s11")
        A("  s_add_u32 s11, s11, 1")
        A(f"  s_waitcnt vmcnt({H2-1})")
        unpack(HRING + 4 * u)
        A(f"  buffer_load_dwordx4 {hring(u)}, v2, {W2}, s10 offen {wflags}")
        A("  s_addk_i32 s10, %d" % (0 if hfake else 1152))
        for k in range(8): A(f"  v_fmac_f32 v{OA+k}, s7, v{T+k}")
    A("  s_cmp_lt_u32 s11, 36")
    A("  s_cbranch_scc1 L_w2")
    stamp(STH, 1)
    A("  v_lshrrev_b32 v5, 3, v0"); A("  v_mul_u32_u24 v6, 1152, v5")
    A("  v_and_b32 v1, 7, v0"); A("  v_lshl_add_u32 v6, v1, 4, v6")
    A("  s_mov_b32 s10, 0")
    for e in range(5):
        A(f"  buffer_load_dwordx4 {wt(e)}, v6, {W2}, s10 offen offset:1024 {wflags}")
        A(f"  s_addk_i32 s10, {8*1152}")
    A("  v_lshlrev_b32 v5, 2, v5")
    for e in range(5):
        A(f"  ds_bpermute_b32 v{HS+e}, v5, {vZ}")
        A("  v_add_u32 v5, 32, v5")
    A("  s_waitcnt lgkmcnt(0)")
    for e in range(5):
        A(f"  s_waitcnt vmcnt({4-e})")
        unpack(WT + 4 * e)
        for k in range(8): A(f"  v_fmac_f32 v{OA+8+k}, v{HS+e}, v{T+k}")
    A("  s_lshl_b32 s10, s4, 7"); A("  s_lshl_b32 s11, s12, 5"); A("  s_add_u32 s10, s10, s11"); A("  s_mul_i32 s10, s10, 1152")
    A("  v_lshrrev_b32 v5, 3, v0"); A("  v_mul_u32_u24 v5, 2304, v5")
    A("  v_and_b32 v1, 7, v0"); A("  v_lshl_add_u32 v5, v1, 4, v5")
    for e in range(2):
        for par in range(2):
            A(f"  buffer_load_dwordx4 {wt(32+2*e+par)}, v5, {WO}, s10 offen offset:{1024+1152*par} {wflags}")
        if e == 0: A(f"  s_add_u32 s11, s10, {16*1152}"); A("  s_mov_b32 s7, s10"); A("  s_mov_b32 s10, s11")
    A("  s_mov_b32 s10, s7")
    for r in range(32):
        A(f"  s_waitcnt vmcnt({HWO-1})")
        A(f"  buffer_load_dwordx4 {wt(r)}, v2, {WO}, s10 offen {wflags}")
        A("  s_addk_i32 s10, %d" % (0 if hfake else 1152))
    A("L_rdy0:")
    A("  s_mov_b32 s10, 0x05040100"); A("  s_mov_b32 s11, 0x07060302")
    A("  s_waitcnt vmcnt(0)")
    for k in range(18):
        for i in range(4):
            a_, b_ = WT + 8 * k + i, WT + 8 * k + 4 + i
            tmp = T + (i % 4)
            A(f"  v_perm_b32 v{tmp}, v{b_}, v{a_}, s10")
            A(f"  v_perm_b32 v{b_}, v{b_}, v{a_}, s11")
            A(f"  v_mov_b32 v{a_}, v{tmp}")
    if adapt:
        A("  s_cmp_lg_u32 s3, 4"); A("  s_cbranch_scc1 L_ctl_done")
        A("  s_lshl_b32 s9, s2, 7"); A(f"  s_add_u32 s9, s9, {PROG_OFF}")
        A(f"  s_mov_b32 s14, {PROG_OFF}")
        A("  v_add_u32 v6, 1, v0"); A("  v_mul_u32_u24 v6, 17, v6"); A("  v_add_u32 v6, s2, v6"); A("  v_and_b32 v6, 255, v6"); A("  v_lshlrev_b32 v6, 7, v6")
        A("  v_mov_b32 v5, 0"); A("  s_mov_b32 s93, 0")
        A("L_ctl:")
        A(f"  ds_read_b128 v[{T}:{T+3}], v5 offset:{PRG}")
        A("  s_waitcnt lgkmcnt(0)")
        A(f"  v_min_u32 v{T}, v{T}, v{T+1}"); A(f"  v_min_u32 v{T+2}, v{T+2}, v{T+3}"); A(f"  v_min_u32 v{T}, v{T}, v{T+2}")
        A(f"  v_readfirstlane_b32 s7, v{T}")
        A(f"  s_cmp_ge_u32 s7, {pstop}")
        A("  s_cbranch_scc1 L_ctl_end")
        A("  s_mov_b64 exec, 1")
        A(f"  buffer_store_dword v{T}, v5, {WS}, s9 offen sc1")
        A("  s_mov_b64 exec, 0xffff")
        A(f"  buffer_load_dword v{HS}, v6, {WS}, s14 offen sc1")
        A("  s_mov_b64 exec, -1")
        A("  s_waitcnt vmcnt(0)")
        for sh in (8, 4, 2, 1):
            A(f"  v_add_u32_dpp v{HS}, v{HS}, v{HS} row_ror:{sh} row_mask:0xf bank_mask:0xf")
        A(f"  v_readfirstlane_b32 s10, v{HS}")
        A(f"  s_add_u32 s11, s7, {theta}"); A("  s_lshl_b32 s11, s11, 4")
        A("  s_cmp_lt_u32 s11, s10")
        A("  s_cselect_b32 s10, 1, 0")
        A(f"  v_mov_b32 v{HS}, s10")
        A(f"  ds_write_b32 v5, v{HS} offset:{PRG+16}")
        A(f"  s_sleep {csleep}")
        A("  s_add_u32 s93, s93, 1"); A(f"  s_cmp_lt_u32 s93, {SPIN_MAX}")
        A("  s_cbranch_scc1 L_ctl")
        A("L_ctl_end:")
        A("  s_mov_b64 exec, 1")
        A(f"  v_mov_b32 v{T}, 32")
        A(f"  buffer_store_dword v{T}, v5, {WS}, s9 offen sc1")
        A("  s_mov_b64 exec, -1")
        A("L_ctl_done:")
    A("  s_lshl_b32 s7, s12, 7")
    A("  v_lshlrev_b32 v1, 9, v3"); A("  v_lshl_add_u32 v1, v4, 2, v1"); A("  v_add_u32 v1, s7, v1")
    A("  v_mov_b32 v5, 0")
    A("  v_lshlrev_b32 v6, 3, v3")
    A("  v_lshrrev_b32 v7, 3, v0"); A("  v_lshlrev_b32 v7, 3, v7")
    A("  s_mul_i32 s9, s12, 2304")
    A("  v_lshl_add_u32 v8, v0, 5, s9")
    A("  v_and_b32 v9, 7, v0"); A("  v_lshlrev_b32 v9, 3, v9")
    A("  v_bfe_u32 v10, v0, 3, 1"); A("  v_add_u32 v9, v9, v10"); A("  v_lshl_add_u32 v9, v3, 1, v9")
    A("  v_lshl_add_u32 v9, v9, 2, s9")
    A("  s_barrier")
    if stamps:
        A("  s_memrealtime s[100:101]"); A("  s_waitcnt lgkmcnt(0)")
    A(f"  ds_read_b32 v{T}, v1 offset:{OP}")
    A(f"  ds_read_b32 v{T+4}, v1 offset:{OP+64}")
    A(f"  ds_read_b128 v[{HS}:{HS+3}], v5 offset:{ML}")
    A(f"  ds_read_b128 v[{HS+4}:{HS+7}], v5 offset:{ML+16}")
    A(f"  ds_read_b32 v{T+1}, v6 offset:{ML}")
    A("  s_waitcnt lgkmcnt(0)")
    m0, l0, m1, l1, m2, l2, m3, l3 = [f"v{HS+i}" for i in range(8)]
    A(f"  v_max3_f32 v{T+2}, {m0}, {m1}, {m2}"); A(f"  v_max_f32 v{T+2}, v{T+2}, {m3}")
    for mm in (m0, m1, m2, m3, f"v{T+1}"): A(f"  v_sub_f32 {mm}, {mm}, v{T+2}")
    for mm in (m0, m1, m2, m3, f"v{T+1}"): A(f"  v_exp_f32 {mm}, {mm}")
    A(f"  v_mul_f32 v{T+3}, {m0}, {l0}")
    A(f"  v_fmac_f32 v{T+3}, {m1}, {l1}"); A(f"  v_fmac_f32 v{T+3}, {m2}, {l2}"); A(f"  v_fmac_f32 v{T+3}, {m3}, {l3}")
    A(f"  v_rcp_f32 v{T+3}, v{T+3}")
    A(f"  v_mul_f32 v{T}, v{T}, v{T+1}"); A(f"  v_mul_f32 v{T+4}, v{T+4}, v{T+1}")
    A(f"  v_mul_f32 v{T+3}, v{T+3}, {vG_}")
    A(f"  v_permlane32_swap_b32 v{T}, v{T+4}")
    A(f"  v_add_f32 v{T}, v{T}, v{T+4}")
    A(f"  v_mov_b32 v{T+1}, v{T}"); A(f"  v_permlane16_swap_b32 v{T}, v{T+1}"); A(f"  v_add_f32 v{T}, v{T}, v{T+1}")
    A(f"  v_mul_f32 v{T}, v{T}, v{T+3}")
    if dbg:
        A("  s_lshl_b32 s7, s6, 2"); A("  s_add_u32 s7, s7, s12"); A("  s_lshl_b32 s7, s7, 8"); A("  s_add_u32 s7, s7, 0x33000000")
        A("  v_lshlrev_b32 v1, 2, v0")
        A(f"  buffer_store_dword v{T}, v1, {WS}, s7 offen")
        A("  s_waitcnt vmcnt(0)")
    A(f"  v_mov_b32_dpp v{T+1}, v{T} quad_perm:[1,0,3,2] row_mask:0xf bank_mask:0xf")
    A(f"  v_cvt_pk_bf16_f32 v{T}, v{T}, v{T+1}")
    A(f"  ds_bpermute_b32 v{T+2}, v7, v{T}")
    A("  v_add_u32 v7, 128, v7")
    A(f"  ds_bpermute_b32 v{T+3}, v7, v{T}")
    ZS = 60
    for k in range(16): A(f"  v_readlane_b32 s{ZS+k}, v{T}, {2*k if k < 8 else 32 + 2*(k-8)}")
    for k in range(16):
        for i in range(4):
            A(f"  v_dot2c_f32_bf16 v{OA+2*i}, s{ZS+k}, v{WT+8*k+i}")
            A(f"  v_dot2c_f32_bf16 v{OA+2*i+1}, s{ZS+k}, v{WT+8*k+4+i}")
    A(f"  ds_write_b128 v8, v[{OA}:{OA+3}] offset:{OUTP}")
    A(f"  ds_write_b128 v8, v[{OA+4}:{OA+7}] offset:{OUTP+16}")
    A("  s_waitcnt lgkmcnt(2)")
    for e in range(2):
        for i in range(4):
            A(f"  v_dot2c_f32_bf16 v{OA+8+2*i}, v{T+2+e}, v{WT+128+8*e+i}")
            A(f"  v_dot2c_f32_bf16 v{OA+8+2*i+1}, v{T+2+e}, v{WT+128+8*e+4+i}")
    E = OA + 8
    for j in range(4): A(f"  v_permlane32_swap_b32 v{E+j}, v{E+j+4}")
    for j in range(4): A(f"  v_add_f32 v{E+j}, v{E+j}, v{E+j+4}")
    for j in range(2): A(f"  v_permlane16_swap_b32 v{E+j}, v{E+j+2}")
    for j in range(2): A(f"  v_add_f32 v{E+j}, v{E+j}, v{E+j+2}")
    A(f"  v_add_f32_dpp v{E}, v{E}, v{E} row_ror:8 row_mask:0xf bank_mask:0x3")
    A(f"  v_add_f32_dpp v{E}, v{E+1}, v{E+1} row_ror:8 row_mask:0xf bank_mask:0xc")
    A(f"  ds_write_b32 v9, v{E} offset:{OUTP+2048}")
    A("  s_waitcnt lgkmcnt(0)")
    A("  s_barrier")

    A("L_final:")
    if stamps:
        A("  s_cmp_lg_u32 s3, 0"); A("  s_cbranch_scc1 L_nst6")
        stamp(STR, 6)
        A("L_nst6:")
    F = 24
    A("  s_mov_b32 s84, s42"); A("  s_mov_b32 s85, s43"); A("  s_mov_b32 s86, 0x40000000"); A("  s_mov_b32 s87, 0x20000")
    A("  s_mul_i32 s7, s3, 288")
    A("  v_lshl_add_u32 v1, v0, 3, s7")
    A("  s_mov_b32 exec_lo, -1"); A("  s_mov_b32 exec_hi, 15")
    for w in range(4): A(f"  ds_read_b64 v[{F+2*w}:{F+2*w+1}], v1 offset:{OUTP+2304*w}")
    A("  v_mul_u32_u24 v5, 57, v0"); A("  v_lshrrev_b32 v5, 9, v5")
    A("  v_mul_u32_u24 v6, 9, v5"); A("  v_sub_u32 v6, v0, v6")
    A(f"  v_mul_u32_u24 v5, {INBOX_STRIDE}, v5"); A("  v_lshl_add_u32 v5, v6, 4, v5")
    A("  s_lshl_b32 s7, s5, 5"); A("  s_lshl_b32 s10, s3, 2"); A("  s_add_u32 s7, s7, s10"); A(f"  s_mul_i32 s7, s7, {INBOX_STRIDE}")
    A("  s_mul_i32 s10, s4, 144"); A("  s_add_u32 s7, s7, s10")
    A("  s_add_u32 s26, s26, 1"); A("  s_not_b32 s27, s26")
    A(f"  v_mov_b32 v{F+9}, s26"); A(f"  v_mov_b32 v{F+11}, s27")
    A("  s_waitcnt lgkmcnt(0)")
    A(f"  v_add_f32 v{F}, v{F}, v{F+2}"); A(f"  v_add_f32 v{F+1}, v{F+1}, v{F+3}")
    A(f"  v_add_f32 v{F+4}, v{F+4}, v{F+6}"); A(f"  v_add_f32 v{F+5}, v{F+5}, v{F+7}")
    A(f"  v_add_f32 v{F+8}, v{F}, v{F+4}"); A(f"  v_add_f32 v{F+10}, v{F+1}, v{F+5}")
    A(f"  buffer_store_dwordx4 v[{F+8}:{F+11}], v5, {WS}, s7 offen sc1")
    A("  s_cmp_lg_u32 s3, 0")
    A("  s_cbranch_scc1 L_fin")
    stamp(STR, 7)
    A("  s_mov_b64 exec, -1")
    A("  v_mul_u32_u24 v5, 144, v3"); A("  v_lshl_add_u32 v5, v4, 4, v5")
    A(f"  s_mul_i32 s7, s6, {INBOX_STRIDE}")
    A("  v_cmp_gt_u32 vcc, 9, v4")
    PDS = [16, 18, 20, 22, 24, 28, 30, 32]
    pd = lambda k: f"s[{PDS[k]}:{PDS[k]+1}]"
    for k in range(8): A(f"  s_mov_b64 {pd(k)}, vcc")
    A("  s_mov_b32 s80, s34"); A("  s_mov_b32 s81, s35"); A("  s_mov_b32 s82, 1152"); A("  s_mov_b32 s83, 0x20000")
    A("  s_mul_i32 s11, s4, 36")
    A("  v_lshlrev_b32 v1, 2, v4")
    A(f"  buffer_load_dword v10, v1, {B2}, s11 offen")
    A(f"  v_mov_b32 v6, {GATE}"); A("  ds_read_b32 v8, v6")
    A("  s_mov_b32 s88, s38"); A("  s_mov_b32 s89, s39"); A("  s_mov_b32 s90, 9216"); A("  s_mov_b32 s91, 0x20000")
    G = 40
    A("  s_mov_b32 s93, 0")
    A("L_poll:")
    for k in range(8):
        A(f"  s_mov_b64 exec, {pd(k)}")
        A(f"  s_cbranch_execz L_sk{k}")
        A(f"  buffer_load_dwordx4 v[{G+4*k}:{G+4*k+3}], v5, {WS}, s7 offen offset:{576*k} sc1")
        A(f"L_sk{k}:")
    A("  s_waitcnt vmcnt(0)")
    A("  s_mov_b64 s[10:11], 0")
    for k in range(8):
        A(f"  s_mov_b64 exec, {pd(k)}")
        A(f"  v_xor_b32 v{T}, s26, v{G+4*k+1}"); A(f"  v_xor_b32 v{T+1}, s27, v{G+4*k+3}"); A(f"  v_or_b32 v{T}, v{T}, v{T+1}")
        A(f"  v_cmp_ne_u32 {pd(k)}, 0, v{T}")
        A(f"  s_and_b64 {pd(k)}, {pd(k)}, exec")
        A(f"  s_or_b64 s[10:11], s[10:11], {pd(k)}")
    A("  s_cmp_eq_u64 s[10:11], 0")
    A("  s_cbranch_scc1 L_pdone")
    if poll_sleep: A(f"  s_sleep {poll_sleep}")
    A("  s_add_u32 s93, s93, 1"); A(f"  s_cmp_lt_u32 s93, {SPIN_MAX}")
    A("  s_cbranch_scc1 L_poll")
    A("L_pdone:")
    stamp(STR, 8)
    A("  s_mov_b64 exec, -1")
    for k in range(1, 8):
        A(f"  v_add_f32 v{G}, v{G}, v{G+4*k}"); A(f"  v_add_f32 v{G+2}, v{G+2}, v{G+4*k+2}")
    A(f"  v_permlane32_swap_b32 v{G}, v{G+2}")
    A(f"  v_add_f32 v{G}, v{G}, v{G+2}")
    A(f"  v_mov_b32 v{T}, v{G}"); A(f"  v_permlane16_swap_b32 v{G}, v{T}"); A(f"  v_add_f32 v{G}, v{G}, v{T}")
    A(f"  v_mov_b32 v{T}, v{G}"); A(f"  v_permlane32_swap_b32 v{G}, v{T}")
    A("  s_waitcnt lgkmcnt(0)")
    A("  v_sub_f32 v8, 1.0, v8")
    A(f"  v_lshlrev_b32 v{T+1}, 16, v10"); A(f"  v_and_b32 v{T+2}, {sMASK}, v10")
    A(f"  v_fmac_f32 v{G}, v8, v{T+1}"); A(f"  v_fmac_f32 v{T}, v8, v{T+2}")
    A(f"  v_cvt_pk_bf16_f32 v{G}, v{G}, v{T}")
    A("  s_mul_i32 s7, s5, 1152"); A("  s_mul_i32 s12, s4, 36"); A("  s_add_u32 s7, s7, s12")
    A("  s_mov_b64 exec, 0x1ff")
    A(f"  buffer_store_dword v{G}, v1, {OUT}, s7 offen")
    A("  s_cmp_lg_u32 s4, 0"); A("  s_cbranch_scc1 L_fin")
    A("  s_mov_b64 exec, 1")
    A("  s_lshl_b32 s7, s5, 7"); A(f"  s_add_u32 s7, s7, {EPOCH_OFF}")
    A("  v_mov_b32 v5, s26"); A("  v_mov_b32 v6, 0")
    A(f"  buffer_store_dword v5, v6, {WS}, s7 offen")
    A("L_fin:")
    if stamps:
        A("  s_mov_b64 exec, 1")
        A("  s_memrealtime s[12:13]")
        A("  s_waitcnt lgkmcnt(0) vmcnt(0)")
        A("  s_and_b32 s7, s3, 3"); A("  s_cmp_lg_u32 s7, 0"); A("  s_cbranch_scc1 L_end")
        A("  s_lshl_b32 s7, s2, 8"); A("  s_add_u32 s7, s7, 0x20000000")
        A("  s_lshl_b32 s10, s3, 5"); A("  s_add_u32 s7, s7, s10")
        A("  v_mov_b32 v1, 0")
        A("  v_mov_b32 v4, s98"); A("  v_mov_b32 v5, s99"); A("  v_mov_b32 v6, s12"); A("  v_mov_b32 v7, s13")
        A(f"  buffer_store_dwordx4 v[4:7], v1, {WS}, s7 offen")
        A("  s_getreg_b32 s13, hwreg(HW_REG_XCC_ID)")
        A("  v_mov_b32 v8, s13"); A("  v_mov_b32 v9, 0"); A("  v_mov_b32 v10, s100"); A("  v_mov_b32 v11, s101")
        A(f"  buffer_store_dwordx4 v[8:11], v1, {WS}, s7 offen offset:16")
        A("  s_cmp_lg_u32 s3, 0"); A("  s_cbranch_scc1 L_sth")
        for i, r in enumerate(STR):
            A(f"  v_mov_b32 v12, s{r}"); A(f"  v_mov_b32 v13, s{r+1}")
            A(f"  buffer_store_dwordx2 v[12:13], v1, {WS}, s7 offen offset:{32+8*i}")
            A("  s_nop 1")
        A("  s_branch L_end")
        A("L_sth:")
        for i, r in enumerate(STH[:4]):
            A(f"  v_mov_b32 v12, s{r}"); A(f"  v_mov_b32 v13, s{r+1}")
            A(f"  buffer_store_dwordx2 v[12:13], v1, {WS}, s7 offen offset:{32+8*i}")
            A("  s_nop 1")
    A("L_end:")
    A("  s_endpgm")
    A('.section .rodata,"a"'); A(".p2align 6"); A(f".amdhsa_kernel {KN}")
    A("  .amdhsa_next_free_vgpr 256"); A("  .amdhsa_next_free_sgpr 102"); A("  .amdhsa_accum_offset 256")
    A("  .amdhsa_group_segment_fixed_size 0"); A("  .amdhsa_kernarg_size 112"); A("  .amdhsa_user_sgpr_count 2")
    A("  .amdhsa_user_sgpr_kernarg_segment_ptr 1"); A("  .amdhsa_system_sgpr_workgroup_id_x 1"); A(".end_amdhsa_kernel")
    return A.fix()

if __name__ == "__main__":
    import argparse
    ap = argparse.ArgumentParser()
    ap.add_argument("-o", default="k.s")
    for n, d in [("R", 5), ("HRW", 2), ("H2", 2), ("HWO", 4), ("RB", 0), ("NB", 0), ("EK", 1), ("EBAR", 4), ("poll_sleep", 2), ("adapt", 0), ("touch", 0), ("map2", 0), ("noproto", 0), ("theta", 1), ("csleep", 8), ("pstop", 28)]:
        ap.add_argument("--" + n, type=int, default=d)
    ap.add_argument("--stamps", action="store_true"); ap.add_argument("--dbg", action="store_true"); ap.add_argument("--prio", action="store_true"); ap.add_argument("--norot", action="store_true"); ap.add_argument("--hfake", action="store_true"); ap.add_argument("--skiph", action="store_true")
    ap.add_argument("--wflags", default=""); ap.add_argument("--kflags", default="nt"); ap.add_argument("--vflags", default="nt")
    a = ap.parse_args()
    kw = vars(a).copy(); o = kw.pop("o"); kw["rot"] = not kw.pop("norot")
    if kw["RB"] == 0: kw["RB"] = None
    open(o, "w").write(gen(**kw))
    print("wrote", o)
```

```python
import sys, math, struct
from asmlib import Asm

KN = "gated_mix__mha_block_cached__mixer_channel_mlp__decode_kernel"
HEADER = open("gated_mix__mha_block_cached__mixer_channel_mlp__decode.s.ref").read().split("; Override launch")[0]
f2u = lambda x: "0x%08x" % struct.unpack("<I", struct.pack("<f", x))[0]

QP   = 0
OP   = 2048
SC   = 4096
ML   = SC + 4 * 4096 + 256
GATE = ML + 32
HCNT = GATE + 4
PRG  = ML + 48
YL   = ML + 96
HP   = YL + 2560
OUTP = HP + 6912
LDS_TOTAL = OUTP + 9216
TAG = 0x5AFE1234
SPIN_MAX = 100000
EPOCH_OFF = 0x300000
PROG_OFF = 0x200000
INBOX_STRIDE = 5120

class Q:
    def __init__(self, items=None): self.q = list(items or [])
    def issue(self, x): self.q.append(x)
    def wait_for(self, x):
        if x not in self.q: return None
        i = self.q.index(x)
        n = len(self.q) - 1 - i
        self.q = self.q[i + 1:]
        return n

def gen(R=5, kflags="nt", vflags="nt", wflags="", stamps=False, dbg=False, HRW=2, H2=2, HWO=4, RB=None, NB=0, EK=1, EBAR=4,
        poll_sleep=2, prio=False, rot=True, hfake=False, skiph=False, WQW=16, touch=0, map2=0, noproto=0, adapt=0, theta=1, csleep=8, pstop=28):
    A = Asm()
    S = 16
    NPRE = 32
    STR = [56, 58, 60, 62, 64, 66, 68, 70, 72]
    STH = [44, 46, 56, 58, 8]
    def stamp(regs, i):
        if stamps:
            A(f"  s_memrealtime s[{regs[i]}:{regs[i]+1}]"); A("  s_waitcnt lgkmcnt(0)")
    A(HEADER.rstrip())
    A(f"; @launch grid=(256,1,1) block=(512,1,1) lds={LDS_TOTAL}")
    A('.amdgcn_target "amdgcn-amd-amdhsa--gfx950"')
    A(".text"); A(f".globl {KN}"); A(".p2align 8"); A(f".type {KN},@function"); A(f"{KN}:")
    KV = "s[44:47]"; WQ = "s[48:51]"; XA = "s[52:55]"; GW = "s[60:63]"; W1 = "s[64:67]"
    B1 = "s[68:71]"; W2 = "s[72:75]"; WO = "s[76:79]"; B2 = "s[80:83]"; WS = "s[84:87]"; OUT = "s[88:91]"
    sMASK = "s92"; sM2 = "s[94:95]"; sM1 = "s[96:97]"
    ACC = 8; T = 16
    RING = 24; PRE = 88; SCR = 216; Qr = 232
    vP, vPn, vSC, vRG = "v236", "v237", "v238", "v239"
    AV = 240
    vMX, vLS, vNM = "v248", "v249", "v250"
    WT = 24; HRING = 168; HS = 200; OA = 216; HX = 232
    vG_, v1mG, vZ = "v246", "v247", "v248"
    ring = lambda s: f"v[{RING+4*(s%S)}:{RING+4*(s%S)+3}]"
    pre = lambda t: f"v[{PRE+4*t}:{PRE+4*t+3}]"
    wt = lambda i: f"v[{WT+4*i}:{WT+4*i+3}]"
    ktile = lambda t: pre(t) if t < NPRE else ring(t)
    t0, t1 = f"v{T}", f"v{T+1}"

    A("  s_cmp_ge_u32 s2, 256")
    A("  s_cbranch_scc1 L_end")
    A("  s_load_dwordx16 s[16:31], s[0:1], 0")
    A("  s_load_dwordx8 s[32:39], s[0:1], 64")
    A("  s_load_dwordx4 s[40:43], s[0:1], 96")
    if stamps: A("  s_memrealtime s[98:99]")
    A("  v_lshrrev_b32 v1, 6, v0")
    A("  v_and_b32 v0, 63, v0")
    A("  v_lshlrev_b32 v2, 4, v0")
    A("  v_readfirstlane_b32 s3, v1")
    A("  s_and_b32 s4, s2, 7")
    A("  s_lshl_b32 s4, s4, 2")
    if map2:
        A("  s_bfe_u32 s7, s2, 0x20006")
        A("  s_or_b32 s4, s4, s7")
        A("  s_bfe_u32 s5, s2, 0x30003")
    else:
        A("  s_bfe_u32 s7, s2, 0x20003")
        A("  s_or_b32 s4, s4, s7")
        A("  s_lshr_b32 s5, s2, 5")
    A("  s_lshl_b32 s6, s5, 5")
    A("  s_or_b32 s6, s6, s4")
    A("  s_lshl_b32 s9, s6, 20")
    A("  s_lshl_b32 s13, s3, 10")
    A("  s_mov_b32 s46, 0x100000"); A("  s_mov_b32 s47, 0x20000")
    A("  v_lshrrev_b32 v3, 4, v0")
    A("  v_and_b32 v4, 15, v0")
    A("  s_mov_b32 s92, 0xffff0000")
    A("  s_mov_b32 s8, s13")
    A("  s_cmp_ge_u32 s3, 4")
    A("  s_cbranch_scc1 L_helper")
    q = Q()
    def kissue(t, flags):
        A(f"  buffer_load_dwordx4 {ktile(t) if t < 48 else ring(t)}, v2, {KV}, s8 offen {flags}")
        A("  s_addk_i32 s8, 4096")
        q.issue(t)
    def kwait(t):
        n = q.wait_for(t)
        if n is not None: A(f"  s_waitcnt vmcnt({n})")
    A("  s_waitcnt lgkmcnt(0)")
    A("  s_add_u32 s44, s18, s9"); A("  s_addc_u32 s45, s19, 0")
    for t in range(R): kissue(t, kflags)
    A("  s_lshl_b32 s7, s5, 7"); A(f"  s_add_u32 s7, s7, {EPOCH_OFF}")
    A("  s_load_dword s26, s[42:43], s7")
    if prio: A("  s_setprio 2")
    A("  s_add_u32 s14, s20, s9"); A("  s_addc_u32 s15, s21, 0")
    if touch & 1:
        A("  v_lshlrev_b32 v1, 14, v0"); A("  s_lshl_b32 s7, s3, 12"); A("  v_add_u32 v1, s7, v1")
        A("  global_load_dword v255, v1, s[14:15] nt")
        q.issue("touchV")
    A("  v_and_b32 v1, 2, v0"); A(f"  v_cmp_ne_u32 {sM2}, 0, v1")
    A("  v_and_b32 v1, 1, v0"); A(f"  v_cmp_ne_u32 {sM1}, 0, v1")
    A("  v_lshlrev_b32 v5, 5, v4"); A("  v_lshl_add_u32 v5, v3, 3, v5")
    A("  s_lshl_b32 s7, s3, 9"); A(f"  v_add_u32 {vRG}, s7, v5")
    A("  s_lshl_b32 s7, s3, 12"); A(f"  v_lshl_add_u32 {vSC}, v0, 2, s7")
    for k in range(8): A(f"  v_mov_b32 v{AV+k}, 0")
    A(f"  v_mov_b32 {vMX}, 0xff800000"); A(f"  v_mov_b32 {vLS}, 0")
    last_paced = 47 - EBAR
    for t in range(last_paced - R + 1):
        kwait(t); kissue(t + R, kflags)
    stamp(STR, 4)
    A("  s_barrier")
    for t in range(last_paced + 1, 48): kissue(t, kflags)
    A("  v_lshlrev_b32 v5, 5, v4")
    for w in range(2):
        A(f"  ds_read_b128 v[{SCR+8*w}:{SCR+8*w+3}], v5 offset:{QP+512*w}")
        A(f"  ds_read_b128 v[{SCR+8*w+4}:{SCR+8*w+7}], v5 offset:{QP+512*w+16}")
    A(f"  ds_read_b128 v[{ACC}:{ACC+3}], v5 offset:{QP+1024}")
    A(f"  ds_read_b128 v[{ACC+4}:{ACC+7}], v5 offset:{QP+1024+16}")
    A(f"  ds_read_b128 v[{T}:{T+3}], v5 offset:{QP+1536}")
    A(f"  ds_read_b128 v[{T+4}:{T+7}], v5 offset:{QP+1536+16}")
    A("  s_waitcnt lgkmcnt(0)")
    for k in range(8):
        A(f"  v_add_f32 v{SCR+k}, v{SCR+k}, v{SCR+8+k}")
        A(f"  v_add_f32 v{ACC+k}, v{ACC+k}, v{T+k}")
    for k in range(8): A(f"  v_add_f32 v{SCR+k}, v{SCR+k}, v{ACC+k}")
    for k in range(4): A(f"  v_cvt_pk_bf16_f32 v{Qr+k}, v{SCR+2*k}, v{SCR+2*k+1}")
    if dbg:
        A("  s_cmp_lg_u32 s3, 0"); A("  s_cbranch_scc1 L_dq")
        A("  s_mov_b32 s84, s42"); A("  s_mov_b32 s85, s43"); A("  s_mov_b32 s86, 0x40000000"); A("  s_mov_b32 s87, 0x20000")
        A("  s_lshl_b32 s7, s6, 8"); A("  s_add_u32 s7, s7, 0x30000000")
        A("  v_lshlrev_b32 v1, 4, v4")
        A(f"  buffer_store_dwordx4 v[{Qr}:{Qr+3}], v1, {WS}, s7 offen")
        A("  s_waitcnt vmcnt(0)")
        A("L_dq:")
    stamp(STR, 0)
    a = lambda i: f"v{SCR+i}"
    def kdots(u, r):
        for k in range(4):
            c = "0" if k == 0 else a(u)
            A(f"  v_dot2_f32_bf16 {a(u)}, v{r+k}, v{Qr+k}, {c}")
    def kreduce():
        for i in range(8):
            A(f"  v_add_f32_dpp {a(i)}, {a(i)}, {a(i)} row_ror:8 row_mask:0xf bank_mask:0x3")
            A(f"  v_add_f32_dpp {a(i)}, {a(i+8)}, {a(i+8)} row_ror:8 row_mask:0xf bank_mask:0xc")
        for i in range(4):
            A(f"  v_add_f32_dpp {a(i)}, {a(i)}, {a(i)} row_shl:4 row_mask:0xf bank_mask:0x5")
            A(f"  v_add_f32_dpp {a(i)}, {a(i+4)}, {a(i+4)} row_shr:4 row_mask:0xf bank_mask:0xa")
        for i in range(2):
            A(f"  v_cndmask_b32 v{T+i}, {a(i)}, {a(i+2)}, {sM2}")
            A(f"  v_cndmask_b32 v{T+2+i}, {a(i+2)}, {a(i)}, {sM2}")
        for i in range(2):
            A(f"  v_add_f32_dpp v{T+i}, v{T+2+i}, v{T+i} quad_perm:[2,3,0,1] row_mask:0xf bank_mask:0xf")
        A(f"  v_cndmask_b32 v{T+4}, v{T}, v{T+1}, {sM1}")
        A(f"  v_cndmask_b32 v{T+5}, v{T+1}, v{T}, {sM1}")
        A(f"  v_add_f32_dpp v{T+4}, v{T+5}, v{T+4} quad_perm:[1,0,3,2] row_mask:0xf bank_mask:0xf")
        A(f"  ds_write_b32 {vSC}, v{T+4} offset:{SC}")
        A(f"  v_max_f32 {vMX}, {vMX}, v{T+4}")
        A(f"  v_add_u32 {vSC}, 256, {vSC}")
    for blk in range(2):
        for u in range(16): kdots(u, PRE + 4 * (16 * blk + u))
        kreduce()
    nxt = 48
    for u in range(16):
        t = 32 + u
        kwait(t)
        want = t + R + (EK if u == 15 else 0)
        while nxt <= want:
            kissue(nxt, kflags); nxt += 1
        kdots(u, RING + 4 * (u % S))
    kreduce()
    entry_state = [x - 48 for x in q.q]
    A("  s_mov_b32 s12, 3")
    A("L_kloop:")
    if stamps:
        A("  s_cmp_lg_u32 s12, 9"); A("  s_cbranch_scc1 L_nomid")
        A(f"  s_memrealtime s[{STR[5]}:{STR[5]+1}]"); A("  s_waitcnt lgkmcnt(0)")
        A("L_nomid:")
    q = Q(entry_state); nxt = R + EK
    def kissue2(t, flags):
        if t == 16:
            A("  s_cmp_eq_u32 s12, 15")
            A("  s_cselect_b32 s44, s14, s44"); A("  s_cselect_b32 s45, s15, s45"); A("  s_cselect_b32 s8, s13, s8")
        A(f"  buffer_load_dwordx4 {ring(t)}, v2, {KV}, s8 offen {flags}")
        A("  s_addk_i32 s8, 4096")
        q.issue(t)
    for u in range(16):
        kwait(u)
        want = u + R + (EK if u == 15 else 0)
        while nxt <= want:
            kissue2(nxt, kflags); nxt += 1
        kdots(u, RING + 4 * (u % S))
    kreduce()
    assert [x - 16 for x in q.q] == entry_state, (q.q, entry_state)
    A("  s_add_u32 s12, s12, 1")
    A("  s_cmp_lt_u32 s12, 16")
    A("  s_cbranch_scc1 L_kloop")
    stamp(STR, 1)
    A(f"  v_subrev_u32 {vSC}, 4096, {vSC}")
    A(f"  ds_read_b32 {vPn}, {vSC} offset:{SC}")
    def allreduce(op, v, tmp):
        for sh in (8, 4, 2, 1):
            A(f"  {op}_dpp {v}, {v}, {v} row_ror:{sh} row_mask:0xf bank_mask:0xf")
        A(f"  v_mov_b32 {tmp}, {v}"); A(f"  v_permlane16_swap_b32 {v}, {tmp}"); A(f"  {op} {v}, {v}, {tmp}")
        A(f"  v_mov_b32 {tmp}, {v}"); A(f"  v_permlane32_swap_b32 {v}, {tmp}"); A(f"  {op} {v}, {v}, {tmp}")
    allreduce("v_max_f32", vMX, t1)
    SC2 = (128 ** -0.5) * math.log2(math.e)
    A(f"  s_mov_b32 s7, {f2u(SC2)}")
    A(f"  v_mul_f32 {vMX}, s7, {vMX}")
    if dbg:
        A("  s_mov_b32 s84, s42"); A("  s_mov_b32 s85, s43"); A("  s_mov_b32 s86, 0x40000000"); A("  s_mov_b32 s87, 0x20000")
        A("  s_lshl_b32 s10, s6, 2"); A("  s_add_u32 s10, s10, s3"); A("  s_lshl_b32 s10, s10, 12"); A("  s_add_u32 s10, s10, 0x31000000")
        A("  v_lshlrev_b32 v1, 2, v0")
        for i in range(16): A(f"  ds_read_b32 {a(i)}, {vSC} offset:{SC+256*i}")
        A("  s_waitcnt lgkmcnt(0)")
        for i in range(16): A(f"  buffer_store_dword {a(i)}, v1, {WS}, s10 offen offset:{256*i}")
        A("  s_waitcnt vmcnt(0)")
    A("  s_waitcnt lgkmcnt(0)")
    A(f"  v_fma_f32 {vP}, {vPn}, s7, -{vMX}")
    A(f"  v_exp_f32 {vP}, {vP}")
    A("  s_mov_b32 s12, 0")
    stamp(STR, 2)
    def unpack(r):
        for k in range(4):
            A(f"  v_lshlrev_b32 v{T+2*k}, 16, v{r+k}")
            A(f"  v_and_b32 v{T+2*k+1}, {sMASK}, v{r+k}")
    def vloop(Rx, state, extra_first, lab, nend):
        D = adapt if adapt else Rx
        qq = Q(state)
        n = max(state) + 1
        while n < D:
            A(f"  buffer_load_dwordx4 {ring(n)}, v2, {KV}, s8 offen {vflags}"); A("  s_addk_i32 s8, 4096"); qq.issue(n); n += 1
        steady = list(range(D))
        cnt = [0]
        def body(qq, n):
            cnt[0] += 1
            A(f"  v_add_u32 {vSC}, 256, {vSC}")
            A(f"  ds_read_b32 {vPn}, {vSC} offset:{SC}")
            if adapt:
                A(f"  ds_read_b32 v251, v252 offset:{PRG+16}")
                A("  s_lshl_b32 s10, s12, 1"); A("  v_mov_b32 v253, s10")
                A(f"  ds_write_b32 v254, v253 offset:{PRG}")
            A(f"  v_add_f32 {vLS}, {vLS}, {vP}")
            for u in range(16):
                w = qq.wait_for(u)
                if w is not None: A(f"  s_waitcnt vmcnt({w})")
                while n <= u + D:
                    if adapt:
                        A(f"  s_cbranch_vccnz {lab}_h{cnt[0]}_{u}")
                        A(f"  s_waitcnt vmcnt({Rx-1})")
                        A(f"{lab}_h{cnt[0]}_{u}:")
                    A(f"  buffer_load_dwordx4 {ring(n)}, v2, {KV}, s8 offen {vflags}"); A("  s_addk_i32 s8, 4096"); qq.issue(n); n += 1
                unpack(RING + 4 * (u % S))
                for k in range(8):
                    A(f"  v_fmac_f32_dpp v{AV+k}, {vP}, v{T+k} row_newbcast:{u} row_mask:0xf bank_mask:0xf")
                if u == 8:
                    A("  s_waitcnt lgkmcnt(0)")
                    A(f"  v_fma_f32 {vPn}, {vPn}, s7, -{vMX}")
                    A(f"  v_exp_f32 {vPn}, {vPn}")
                    if adapt:
                        A("  v_readfirstlane_b32 s10, v251")
                        A("  v_add_u32 v253, 1, v253")
                        A(f"  ds_write_b32 v254, v253 offset:{PRG}")
                        A("  s_cmp_lg_u32 s10, 0")
                        A("  s_cselect_b64 vcc, -1, 0")
            A(f"  v_mov_b32 {vP}, {vPn}")
            A("  s_add_u32 s12, s12, 1")
            return [x - 16 for x in qq.q]
        if qq.q != steady:
            st = body(qq, n)
            assert st == steady, (st, steady)
        A(f"{lab}:")
        st = body(Q(steady), D)
        assert st == steady
        A(f"  s_cmp_lt_u32 s12, {nend}")
        A(f"  s_cbranch_scc1 {lab}")
        return steady
    if adapt:
        A("  s_mov_b64 vcc, 0")
        A("  v_mov_b32 v252, 0"); A("  s_lshl_b32 s10, s3, 2"); A("  v_mov_b32 v254, s10")
    st = entry_state
    if RB is None or NB == 0:
        vloop(R, st, 0, "L_vloopA", 16)
    elif NB >= 16:
        vloop(RB, st, 0, "L_vloopA", 16)
    else:
        st = vloop(R, st, 0, "L_vloopA", 16 - NB)
        vloop(RB, st, 0, "L_vloopB", 16)
    stamp(STR, 3)
    def reduce_g(a_):
        for j in range(4): A(f"  v_permlane32_swap_b32 v{a_+j}, v{a_+j+4}")
        for j in range(4): A(f"  v_add_f32 v{a_+j}, v{a_+j}, v{a_+j+4}")
        for j in range(2): A(f"  v_permlane16_swap_b32 v{a_+j}, v{a_+j+2}")
        for j in range(2): A(f"  v_add_f32 v{a_+j}, v{a_+j}, v{a_+j+2}")
    reduce_g(AV)
    A(f"  ds_write_b64 {vRG}, v[{AV}:{AV+1}] offset:{OP}")
    allreduce("v_add_f32", vLS, t1)
    A(f"  v_mov_b32 v{T+2}, {vMX}"); A(f"  v_mov_b32 v{T+3}, {vLS}")
    A("  s_lshl_b32 s7, s3, 3"); A("  v_mov_b32 v1, s7")
    A(f"  ds_write_b64 v1, v[{T+2}:{T+3}] offset:{ML}")
    A("  s_waitcnt lgkmcnt(0)")
    A("  s_barrier")
    A("  s_barrier")
    A("  s_branch L_final")

    A("L_helper:")
    A("  s_sub_u32 s12, s3, 4")
    A("  s_mul_i32 s7, s5, 1152")
    A("  s_mul_i32 s14, s5, 9"); A("  s_lshr_b32 s14, s14, 1")
    if not rot: A("  s_mov_b32 s14, 0")
    for k in range(3):
        A(f"  s_add_u32 s15, s14, {16*k}")
        A(f"  v_add_u32 v{6+k}, s15, v4")
        A(f"  v_subrev_u32 v5, 36, v{6+k}")
        A(f"  v_min_u32 v{6+k}, v{6+k}, v5")
        A(f"  v_lshlrev_b32 v{6+k}, 3, v{6+k}")
        A(f"  v_lshl_add_u32 v{6+k}, v3, 1, v{6+k}")
    A("  v_lshlrev_b32 v1, 4, v4"); A("  v_lshl_add_u32 v1, v3, 13, v1")
    A(f"  s_mul_i32 s10, s12, {144*8192}"); A("  s_lshl_b32 s11, s4, 8"); A("  s_add_u32 s10, s10, s11")
    A(f"  s_add_u32 s15, s10, {36*32768}")
    A("  s_mov_b32 s9, s10")
    A("  s_lshl_b32 s14, s14, 15"); A("  s_add_u32 s10, s10, s14")
    A("  s_mul_i32 s11, s12, 288")
    A(f"  s_mov_b32 s50, {576*8192}"); A("  s_mov_b32 s51, 0x20000")
    A("  s_mov_b32 s54, 1152"); A("  s_mov_b32 s55, 0x20000")
    A("  s_waitcnt lgkmcnt(0)")
    A("  s_add_u32 s52, s16, s7"); A("  s_addc_u32 s53, s17, 0")
    A("  s_lshl_b32 s7, s5, 7"); A(f"  s_add_u32 s7, s7, {EPOCH_OFF}")
    A("  s_load_dword s26, s[42:43], s7")
    A("  s_mov_b32 s48, s22"); A("  s_mov_b32 s49, s23")
    for k in range(3): A(f"  buffer_load_ushort v{6+k}, v{6+k}, {XA}, s11 offen")
    if touch & 2:
        A("  v_mul_u32_u24 v255, 82944, v0")
        A("  s_mul_i32 s7, s4, 288"); A("  v_add_u32 v255, s7, v255")
        A("  global_load_dword v254, v255, s[28:29]")
        A("  v_mul_u32_u24 v255, 2592, v0"); A(f"  s_mul_i32 s7, s4, {144*1152}"); A("  v_add_u32 v255, s7, v255")
        A("  global_load_dword v253, v255, s[32:33]")
        A("  v_mul_u32_u24 v255, 2304, v0"); A(f"  s_mul_i32 s7, s4, {128*1152}"); A("  v_add_u32 v255, s7, v255")
        A("  global_load_dword v252, v255, s[24:25]")
    hq = Q(["x0", "x1", "x2"] + (["t0", "t1", "t2"] if touch & 2 else []))
    def wq_issue(i):
        A(f"  buffer_load_dwordx4 {wt(i)}, v1, {WQ}, s10 offen {wflags}")
        hq.issue(i)
        if i < 35:
            A("  s_add_u32 s10, s10, 32768")
            A("  s_cmp_eq_u32 s10, s15"); A("  s_cselect_b32 s10, s9, s10")
    for i in range(WQW): wq_issue(i)
    A("  s_mov_b32 s76, s24"); A("  s_mov_b32 s77, s25"); A(f"  s_mov_b32 s78, {4096*1152}"); A("  s_mov_b32 s79, 0x20000")
    A("  s_mov_b32 s84, s42"); A("  s_mov_b32 s85, s43"); A("  s_mov_b32 s86, 0x40000000"); A("  s_mov_b32 s87, 0x20000")
    A("  s_mov_b32 s60, s36"); A("  s_mov_b32 s61, s37"); A("  s_mov_b32 s62, 1152"); A("  s_mov_b32 s63, 0x20000")
    A("  s_mov_b32 s68, s30"); A("  s_mov_b32 s69, s31"); A("  s_mov_b32 s70, 9216"); A("  s_mov_b32 s71, 0x20000")
    for k in range(16): A(f"  v_mov_b32 v{OA+k}, 0")
    A(f"  s_waitcnt vmcnt({hq.wait_for('x2')})")
    stamp(STH, 3)
    for k in range(3): A(f"  v_lshlrev_b32 v{6+k}, 16, v{6+k}")
    QA = HS
    def small_loads():
        A("  v_lshlrev_b32 v5, 2, v0")
        for k in range(5): A(f"  buffer_load_dword v{HX+k}, v5, {XA}, 0 offen offset:{256*k}"); hq.issue(("s", k))
        for k in range(5): A(f"  buffer_load_dword v{HX+5+k}, v5, {GW}, 0 offen offset:{256*k}"); hq.issue(("s", 5 + k))
        A("  s_mul_i32 s7, s4, 288"); A("  s_mul_i32 s11, s12, 72"); A("  s_add_u32 s7, s7, s11")
        A("  v_lshlrev_b32 v5, 1, v0")
        A(f"  buffer_load_ushort v{HX+10}, v5, {B1}, s7 offen"); hq.issue(("s", 10))
    for i in range(36):
        w = hq.wait_for(i)
        if w is not None: A(f"  s_waitcnt vmcnt({w})")
        if i + WQW < 36: wq_issue(i + WQW)
        if i + WQW == 36: small_loads()
        unpack(WT + 4 * i)
        src = f"v{6 + i // 16}"
        for k in range(8):
            op = "v_mul_f32_dpp" if i == 0 else "v_fmac_f32_dpp"
            A(f"  {op} v{QA+k}, {src}, v{T+k} row_newbcast:{i%16} row_mask:0xf bank_mask:0xf")
    reduce_g(QA)
    A("  v_lshlrev_b32 v5, 5, v4"); A("  v_lshl_add_u32 v5, v3, 3, v5")
    A("  s_lshl_b32 s7, s12, 9"); A("  v_add_u32 v5, s7, v5")
    A(f"  ds_write_b64 v5, v[{QA}:{QA+1}] offset:{QP}")
    A("  v_mov_b32 v1, 0"); A(f"  v_mov_b32 v5, {HCNT}")
    A("  ds_write_b32 v5, v1")
    if adapt:
        A(f"  v_mov_b32 v5, {PRG}")
        for k in range(5): A(f"  ds_write_b32 v5, v1 offset:{4*k}")
    A("  s_waitcnt lgkmcnt(0)")
    stamp(STH, 2)
    A("  s_barrier")
    X = HS
    A("  s_waitcnt vmcnt(0)")
    for k in range(5):
        A(f"  v_lshlrev_b32 v{X+2*k}, 16, v{HX+k}")
        A(f"  v_and_b32 v{X+2*k+1}, {sMASK}, v{HX+k}")
    A(f"  v_add_f32 {t0}, v{X}, v{X+1}")
    for k in range(2, 10): A(f"  v_add_f32 {t0}, {t0}, v{X+k}")
    allreduce("v_add_f32", t0, t1)
    A(f"  v_mul_f32 {t0}, {f2u(1.0/576)}, {t0}")
    for k in range(10): A(f"  v_sub_f32 v{X+k}, v{X+k}, {t0}")
    A("  v_cmp_gt_u32 vcc, 32, v0")
    A(f"  v_cndmask_b32 v{X+8}, 0, v{X+8}, vcc"); A(f"  v_cndmask_b32 v{X+9}, 0, v{X+9}, vcc")
    A(f"  v_mul_f32 {t0}, v{X}, v{X}")
    for k in range(1, 10): A(f"  v_fmac_f32 {t0}, v{X+k}, v{X+k}")
    allreduce("v_add_f32", t0, t1)
    A(f"  v_mov_b32 {t1}, {f2u(1e-5)}")
    A(f"  v_fmac_f32 {t1}, {f2u(1.0/576)}, {t0}")
    A(f"  v_rsq_f32 {t1}, {t1}")
    for k in range(10): A(f"  v_mul_f32 v{X+k}, v{X+k}, {t1}")
    A("  v_lshlrev_b32 v1, 3, v0")
    for k in range(5): A(f"  ds_write_b64 v1, v[{X+2*k}:{X+2*k+1}] offset:{YL+512*k}")
    A(f"  v_dot2_f32_bf16 {t0}, v{HX}, v{HX+5}, 0")
    for k in range(1, 5): A(f"  v_dot2_f32_bf16 {t0}, v{HX+k}, v{HX+5+k}, {t0}")
    allreduce("v_add_f32", t0, t1)
    A(f"  v_mul_f32 {t0}, {f2u(-math.log2(math.e))}, {t0}")
    A(f"  v_exp_f32 {t0}, {t0}")
    A(f"  v_add_f32 {t0}, 1.0, {t0}")
    A(f"  v_rcp_f32 {vG_}, {t0}")
    A(f"  v_sub_f32 {v1mG}, 1.0, {vG_}")
    A(f"  v_mov_b32 v1, {GATE}")
    A(f"  ds_write_b32 v1, {vG_}")
    if skiph: A("  s_branch L_rdy0")
    A("  v_mul_u32_u24 v5, 57, v0"); A("  v_lshrrev_b32 v5, 10, v5")
    A("  v_mul_u32_u24 v6, 18, v5"); A("  v_sub_u32 v6, v0, v6")
    A("  v_mul_u32_u24 v7, 9216, v5"); A("  v_lshl_add_u32 v7, v6, 4, v7")
    A("  s_mov_b32 s64, s28"); A("  s_mov_b32 s65, s29"); A(f"  s_mov_b32 s66, {576*9216}"); A("  s_mov_b32 s67, 0x20000")
    A(f"  s_mul_i32 s10, s12, {144*9216}"); A("  s_mul_i32 s11, s4, 288"); A("  s_add_u32 s10, s10, s11")
    A("  s_mul_i32 s11, s12, 576")
    A("  v_lshl_add_u32 v1, v5, 2, s11")
    hring = lambda s: f"v[{HRING+4*s}:{HRING+4*s+3}]"
    for u in range(HRW):
        A(f"  buffer_load_dwordx4 {hring(u)}, v7, {W1}, s10 offen {wflags}")
        A("  s_add_u32 s10, s10, %d" % (0 if hfake else 27648))
    for k in range(8): A(f"  v_mov_b32 v{ACC+k}, 0")
    A("  s_mov_b32 s11, 0")
    A("  s_waitcnt lgkmcnt(0)")
    A("L_w1:")
    for u in range(HRW): A(f"  ds_read_b32 v{HS+u}, v1 offset:{YL+12*u}")
    A(f"  v_add_u32 v1, {12*HRW}, v1")
    A(f"  s_cmp_eq_u32 s11, {48//HRW-1}")
    A("  s_cselect_b32 s10, 0x40000000, s10")
    A("  s_waitcnt lgkmcnt(0)")
    for u in range(HRW):
        A(f"  s_waitcnt vmcnt({HRW-1})")
        unpack(HRING + 4 * u)
        A(f"  buffer_load_dwordx4 {hring(u)}, v7, {W1}, s10 offen {wflags}")
        A("  s_add_u32 s10, s10, %d" % (0 if hfake else 27648))
        for k in range(8): A(f"  v_fmac_f32 v{ACC+k}, v{HS+u}, v{T+k}")
    A("  s_add_u32 s11, s11, 1")
    A(f"  s_cmp_lt_u32 s11, {48//HRW}")
    A("  s_cbranch_scc1 L_w1")
    stamp(STH, 0)
    A("  s_mul_i32 s11, s12, 3")
    A("  v_add_u32 v1, s11, v5"); A("  v_mul_u32_u24 v1, 576, v1"); A("  v_lshl_add_u32 v1, v6, 5, v1")
    A("  v_cmp_gt_u32 vcc, 54, v0")
    A("  s_and_saveexec_b64 s[10:11], vcc")
    A(f"  ds_write_b128 v1, v[{ACC}:{ACC+3}] offset:{HP}")
    A(f"  ds_write_b128 v1, v[{ACC+4}:{ACC+7}] offset:{HP+16}")
    A("  s_mov_b64 exec, 1")
    A(f"  v_mov_b32 v1, {HCNT}"); A("  v_mov_b32 v5, 1")
    A("  ds_add_u32 v1, v5")
    A("  s_mov_b64 exec, -1")
    A(f"  v_mov_b32 v1, {HCNT}")
    A("  s_mov_b32 s93, 0")
    A("L_hspin:")
    A("  ds_read_b32 v5, v1")
    A("  s_waitcnt lgkmcnt(0)")
    A("  v_readfirstlane_b32 s10, v5")
    A("  s_cmp_ge_u32 s10, 4")
    A("  s_cbranch_scc1 L_hgo")
    A("  s_sleep 4")
    A("  s_add_u32 s93, s93, 1"); A(f"  s_cmp_lt_u32 s93, {SPIN_MAX}")
    A("  s_cbranch_scc1 L_hspin")
    A("L_hgo:")
    A("  s_mul_i32 s11, s12, 144")
    A("  v_min_u32 v1, 35, v0")
    A("  v_lshl_add_u32 v1, v1, 2, s11")
    for k in range(12): A(f"  ds_read_b32 v{HS+k}, v1 offset:{HP+576*k}")
    A(f"  v_lshlrev_b32 {t0}, 16, v{HX+10}")
    A("  s_waitcnt lgkmcnt(0)")
    for k in range(12): A(f"  v_add_f32 {t0}, {t0}, v{HS+k}")
    k0 = math.sqrt(2 / math.pi)
    A(f"  v_mul_f32 {t1}, {t0}, {t0}")
    A(f"  v_mov_b32 v{T+2}, {f2u(-2*k0*math.log2(math.e))}")
    A(f"  v_fmac_f32 v{T+2}, {f2u(-2*k0*0.044715*math.log2(math.e))}, {t1}")
    A(f"  v_mul_f32 v{T+2}, v{T+2}, {t0}")
    A(f"  v_exp_f32 v{T+2}, v{T+2}")
    A(f"  v_add_f32 v{T+2}, 1.0, v{T+2}")
    A(f"  v_rcp_f32 v{T+2}, v{T+2}")
    A(f"  v_mul_f32 {t0}, {t0}, v{T+2}")
    A(f"  v_mul_f32 {t0}, {v1mG}, {t0}")
    A("  v_cmp_gt_u32 vcc, 36, v0")
    A(f"  v_cndmask_b32 {vZ}, 0, {t0}, vcc")
    if dbg:
        A("  s_lshl_b32 s7, s6, 2"); A("  s_add_u32 s7, s7, s12"); A("  s_lshl_b32 s7, s7, 8"); A("  s_add_u32 s7, s7, 0x32000000")
        A("  v_lshlrev_b32 v1, 2, v0")
        A(f"  buffer_store_dword {vZ}, v1, {WS}, s7 offen")
        A("  s_waitcnt vmcnt(0)")
    A("  s_mul_i32 s10, s4, 144"); A("  s_mul_i32 s11, s12, 36"); A("  s_add_u32 s10, s10, s11"); A("  s_mul_i32 s10, s10, 1152")
    A("  s_add_u32 s72, s32, s10"); A("  s_addc_u32 s73, s33, 0"); A(f"  s_mov_b32 s74, {36*1152}"); A("  s_mov_b32 s75, 0x20000")
    A("  s_mov_b32 s10, 0")
    for u in range(H2):
        A(f"  buffer_load_dwordx4 {hring(u)}, v2, {W2}, s10 offen {wflags}")
        A("  s_addk_i32 s10, %d" % (0 if hfake else 1152))
    A("  s_mov_b32 s11, 0")
    A("L_w2:")
    for u in range(H2):
        A(f"  v_readlane_b32 s7, {vZ}, s11")
        A("  s_add_u32 s11, s11, 1")
        A(f"  s_waitcnt vmcnt({H2-1})")
        unpack(HRING + 4 * u)
        A(f"  buffer_load_dwordx4 {hring(u)}, v2, {W2}, s10 offen {wflags}")
        A("  s_addk_i32 s10, %d" % (0 if hfake else 1152))
        for k in range(8): A(f"  v_fmac_f32 v{OA+k}, s7, v{T+k}")
    A("  s_cmp_lt_u32 s11, 36")
    A("  s_cbranch_scc1 L_w2")
    stamp(STH, 1)
    A("  v_lshrrev_b32 v5, 3, v0"); A("  v_mul_u32_u24 v6, 1152, v5")
    A("  v_and_b32 v1, 7, v0"); A("  v_lshl_add_u32 v6, v1, 4, v6")
    A("  s_mov_b32 s10, 0")
    for e in range(5):
        A(f"  buffer_load_dwordx4 {wt(e)}, v6, {W2}, s10 offen offset:1024 {wflags}")
        A(f"  s_addk_i32 s10, {8*1152}")
    A("  v_lshlrev_b32 v5, 2, v5")
    for e in range(5):
        A(f"  ds_bpermute_b32 v{HS+e}, v5, {vZ}")
        A("  v_add_u32 v5, 32, v5")
    A("  s_waitcnt lgkmcnt(0)")
    for e in range(5):
        A(f"  s_waitcnt vmcnt({4-e})")
        unpack(WT + 4 * e)
        for k in range(8): A(f"  v_fmac_f32 v{OA+8+k}, v{HS+e}, v{T+k}")
    A("  s_lshl_b32 s10, s4, 7"); A("  s_lshl_b32 s11, s12, 5"); A("  s_add_u32 s10, s10, s11"); A("  s_mul_i32 s10, s10, 1152")
    A("  v_lshrrev_b32 v5, 3, v0"); A("  v_mul_u32_u24 v5, 2304, v5")
    A("  v_and_b32 v1, 7, v0"); A("  v_lshl_add_u32 v5, v1, 4, v5")
    for e in range(2):
        for par in range(2):
            A(f"  buffer_load_dwordx4 {wt(32+2*e+par)}, v5, {WO}, s10 offen offset:{1024+1152*par} {wflags}")
        if e == 0: A(f"  s_add_u32 s11, s10, {16*1152}"); A("  s_mov_b32 s7, s10"); A("  s_mov_b32 s10, s11")
    A("  s_mov_b32 s10, s7")
    for r in range(32):
        A(f"  s_waitcnt vmcnt({HWO-1})")
        A(f"  buffer_load_dwordx4 {wt(r)}, v2, {WO}, s10 offen {wflags}")
        A("  s_addk_i32 s10, %d" % (0 if hfake else 1152))
    A("L_rdy0:")
    A("  s_mov_b32 s10, 0x05040100"); A("  s_mov_b32 s11, 0x07060302")
    A("  s_waitcnt vmcnt(0)")
    for k in range(18):
        for i in range(4):
            a_, b_ = WT + 8 * k + i, WT + 8 * k + 4 + i
            tmp = T + (i % 4)
            A(f"  v_perm_b32 v{tmp}, v{b_}, v{a_}, s10")
            A(f"  v_perm_b32 v{b_}, v{b_}, v{a_}, s11")
            A(f"  v_mov_b32 v{a_}, v{tmp}")
    if adapt:
        A("  s_cmp_lg_u32 s3, 4"); A("  s_cbranch_scc1 L_ctl_done")
        A("  s_lshl_b32 s9, s2, 7"); A(f"  s_add_u32 s9, s9, {PROG_OFF}")
        A(f"  s_mov_b32 s14, {PROG_OFF}")
        A("  v_add_u32 v6, 1, v0"); A("  v_mul_u32_u24 v6, 17, v6"); A("  v_add_u32 v6, s2, v6"); A("  v_and_b32 v6, 255, v6"); A("  v_lshlrev_b32 v6, 7, v6")
        A("  v_mov_b32 v5, 0"); A("  s_mov_b32 s93, 0")
        A("L_ctl:")
        A(f"  ds_read_b128 v[{T}:{T+3}], v5 offset:{PRG}")
        A("  s_waitcnt lgkmcnt(0)")
        A(f"  v_min_u32 v{T}, v{T}, v{T+1}"); A(f"  v_min_u32 v{T+2}, v{T+2}, v{T+3}"); A(f"  v_min_u32 v{T}, v{T}, v{T+2}")
        A(f"  v_readfirstlane_b32 s7, v{T}")
        A(f"  s_cmp_ge_u32 s7, {pstop}")
        A("  s_cbranch_scc1 L_ctl_end")
        A("  s_mov_b64 exec, 1")
        A(f"  buffer_store_dword v{T}, v5, {WS}, s9 offen sc1")
        A("  s_mov_b64 exec, 0xffff")
        A(f"  buffer_load_dword v{HS}, v6, {WS}, s14 offen sc1")
        A("  s_mov_b64 exec, -1")
        A("  s_waitcnt vmcnt(0)")
        for sh in (8, 4, 2, 1):
            A(f"  v_add_u32_dpp v{HS}, v{HS}, v{HS} row_ror:{sh} row_mask:0xf bank_mask:0xf")
        A(f"  v_readfirstlane_b32 s10, v{HS}")
        A(f"  s_add_u32 s11, s7, {theta}"); A("  s_lshl_b32 s11, s11, 4")
        A("  s_cmp_lt_u32 s11, s10")
        A("  s_cselect_b32 s10, 1, 0")
        A(f"  v_mov_b32 v{HS}, s10")
        A(f"  ds_write_b32 v5, v{HS} offset:{PRG+16}")
        A(f"  s_sleep {csleep}")
        A("  s_add_u32 s93, s93, 1"); A(f"  s_cmp_lt_u32 s93, {SPIN_MAX}")
        A("  s_cbranch_scc1 L_ctl")
        A("L_ctl_end:")
        A("  s_mov_b64 exec, 1")
        A(f"  v_mov_b32 v{T}, 32")
        A(f"  buffer_store_dword v{T}, v5, {WS}, s9 offen sc1")
        A("  s_mov_b64 exec, -1")
        A("L_ctl_done:")
    A("  s_lshl_b32 s7, s12, 7")
    A("  v_lshlrev_b32 v1, 9, v3"); A("  v_lshl_add_u32 v1, v4, 2, v1"); A("  v_add_u32 v1, s7, v1")
    A("  v_mov_b32 v5, 0")
    A("  v_lshlrev_b32 v6, 3, v3")
    A("  v_lshrrev_b32 v7, 3, v0"); A("  v_lshlrev_b32 v7, 3, v7")
    A("  s_mul_i32 s9, s12, 2304")
    A("  v_lshl_add_u32 v8, v0, 5, s9")
    A("  v_and_b32 v9, 7, v0"); A("  v_lshlrev_b32 v9, 3, v9")
    A("  v_bfe_u32 v10, v0, 3, 1"); A("  v_add_u32 v9, v9, v10"); A("  v_lshl_add_u32 v9, v3, 1, v9")
    A("  v_lshl_add_u32 v9, v9, 2, s9")
    A("  s_barrier")
    if stamps:
        A("  s_memrealtime s[100:101]"); A("  s_waitcnt lgkmcnt(0)")
    A(f"  ds_read_b32 v{T}, v1 offset:{OP}")
    A(f"  ds_read_b32 v{T+4}, v1 offset:{OP+64}")
    A(f"  ds_read_b128 v[{HS}:{HS+3}], v5 offset:{ML}")
    A(f"  ds_read_b128 v[{HS+4}:{HS+7}], v5 offset:{ML+16}")
    A(f"  ds_read_b32 v{T+1}, v6 offset:{ML}")
    A("  s_waitcnt lgkmcnt(0)")
    m0, l0, m1, l1, m2, l2, m3, l3 = [f"v{HS+i}" for i in range(8)]
    A(f"  v_max3_f32 v{T+2}, {m0}, {m1}, {m2}"); A(f"  v_max_f32 v{T+2}, v{T+2}, {m3}")
    for mm in (m0, m1, m2, m3, f"v{T+1}"): A(f"  v_sub_f32 {mm}, {mm}, v{T+2}")
    for mm in (m0, m1, m2, m3, f"v{T+1}"): A(f"  v_exp_f32 {mm}, {mm}")
    A(f"  v_mul_f32 v{T+3}, {m0}, {l0}")
    A(f"  v_fmac_f32 v{T+3}, {m1}, {l1}"); A(f"  v_fmac_f32 v{T+3}, {m2}, {l2}"); A(f"  v_fmac_f32 v{T+3}, {m3}, {l3}")
    A(f"  v_rcp_f32 v{T+3}, v{T+3}")
    A(f"  v_mul_f32 v{T}, v{T}, v{T+1}"); A(f"  v_mul_f32 v{T+4}, v{T+4}, v{T+1}")
    A(f"  v_mul_f32 v{T+3}, v{T+3}, {vG_}")
    A(f"  v_permlane32_swap_b32 v{T}, v{T+4}")
    A(f"  v_add_f32 v{T}, v{T}, v{T+4}")
    A(f"  v_mov_b32 v{T+1}, v{T}"); A(f"  v_permlane16_swap_b32 v{T}, v{T+1}"); A(f"  v_add_f32 v{T}, v{T}, v{T+1}")
    A(f"  v_mul_f32 v{T}, v{T}, v{T+3}")
    if dbg:
        A("  s_lshl_b32 s7, s6, 2"); A("  s_add_u32 s7, s7, s12"); A("  s_lshl_b32 s7, s7, 8"); A("  s_add_u32 s7, s7, 0x33000000")
        A("  v_lshlrev_b32 v1, 2, v0")
        A(f"  buffer_store_dword v{T}, v1, {WS}, s7 offen")
        A("  s_waitcnt vmcnt(0)")
    A(f"  v_mov_b32_dpp v{T+1}, v{T} quad_perm:[1,0,3,2] row_mask:0xf bank_mask:0xf")
    A(f"  v_cvt_pk_bf16_f32 v{T}, v{T}, v{T+1}")
    A(f"  ds_bpermute_b32 v{T+2}, v7, v{T}")
    A("  v_add_u32 v7, 128, v7")
    A(f"  ds_bpermute_b32 v{T+3}, v7, v{T}")
    ZS = 60
    for k in range(16): A(f"  v_readlane_b32 s{ZS+k}, v{T}, {2*k if k < 8 else 32 + 2*(k-8)}")
    for k in range(16):
        for i in range(4):
            A(f"  v_dot2c_f32_bf16 v{OA+2*i}, s{ZS+k}, v{WT+8*k+i}")
            A(f"  v_dot2c_f32_bf16 v{OA+2*i+1}, s{ZS+k}, v{WT+8*k+4+i}")
    A(f"  ds_write_b128 v8, v[{OA}:{OA+3}] offset:{OUTP}")
    A(f"  ds_write_b128 v8, v[{OA+4}:{OA+7}] offset:{OUTP+16}")
    A("  s_waitcnt lgkmcnt(2)")
    for e in range(2):
        for i in range(4):
            A(f"  v_dot2c_f32_bf16 v{OA+8+2*i}, v{T+2+e}, v{WT+128+8*e+i}")
            A(f"  v_dot2c_f32_bf16 v{OA+8+2*i+1}, v{T+2+e}, v{WT+128+8*e+4+i}")
    E = OA + 8
    for j in range(4): A(f"  v_permlane32_swap_b32 v{E+j}, v{E+j+4}")
    for j in range(4): A(f"  v_add_f32 v{E+j}, v{E+j}, v{E+j+4}")
    for j in range(2): A(f"  v_permlane16_swap_b32 v{E+j}, v{E+j+2}")
    for j in range(2): A(f"  v_add_f32 v{E+j}, v{E+j}, v{E+j+2}")
    A(f"  v_add_f32_dpp v{E}, v{E}, v{E} row_ror:8 row_mask:0xf bank_mask:0x3")
    A(f"  v_add_f32_dpp v{E}, v{E+1}, v{E+1} row_ror:8 row_mask:0xf bank_mask:0xc")
    A(f"  ds_write_b32 v9, v{E} offset:{OUTP+2048}")
    A("  s_waitcnt lgkmcnt(0)")
    A("  s_barrier")

    A("L_final:")
    if stamps:
        A("  s_cmp_lg_u32 s3, 0"); A("  s_cbranch_scc1 L_nst6")
        stamp(STR, 6)
        A("L_nst6:")
    F = 24
    A("  s_mov_b32 s84, s42"); A("  s_mov_b32 s85, s43"); A("  s_mov_b32 s86, 0x40000000"); A("  s_mov_b32 s87, 0x20000")
    A("  s_mul_i32 s7, s3, 288")
    A("  v_lshl_add_u32 v1, v0, 3, s7")
    A("  s_mov_b32 exec_lo, -1"); A("  s_mov_b32 exec_hi, 15")
    for w in range(4): A(f"  ds_read_b64 v[{F+2*w}:{F+2*w+1}], v1 offset:{OUTP+2304*w}")
    A("  v_mul_u32_u24 v5, 57, v0"); A("  v_lshrrev_b32 v5, 9, v5")
    A("  v_mul_u32_u24 v6, 9, v5"); A("  v_sub_u32 v6, v0, v6")
    A(f"  v_mul_u32_u24 v5, {INBOX_STRIDE}, v5"); A("  v_lshl_add_u32 v5, v6, 4, v5")
    A("  s_lshl_b32 s7, s5, 5"); A("  s_lshl_b32 s10, s3, 2"); A("  s_add_u32 s7, s7, s10"); A(f"  s_mul_i32 s7, s7, {INBOX_STRIDE}")
    A("  s_mul_i32 s10, s4, 144"); A("  s_add_u32 s7, s7, s10")
    A("  s_add_u32 s26, s26, 1"); A("  s_not_b32 s27, s26")
    A(f"  v_mov_b32 v{F+9}, s26"); A(f"  v_mov_b32 v{F+11}, s27")
    A("  s_waitcnt lgkmcnt(0)")
    A(f"  v_add_f32 v{F}, v{F}, v{F+2}"); A(f"  v_add_f32 v{F+1}, v{F+1}, v{F+3}")
    A(f"  v_add_f32 v{F+4}, v{F+4}, v{F+6}"); A(f"  v_add_f32 v{F+5}, v{F+5}, v{F+7}")
    A(f"  v_add_f32 v{F+8}, v{F}, v{F+4}"); A(f"  v_add_f32 v{F+10}, v{F+1}, v{F+5}")
    A(f"  buffer_store_dwordx4 v[{F+8}:{F+11}], v5, {WS}, s7 offen sc1")
    A("  s_cmp_lg_u32 s3, 0")
    A("  s_cbranch_scc1 L_fin")
    stamp(STR, 7)
    A("  s_mov_b64 exec, -1")
    A("  v_mul_u32_u24 v5, 144, v3"); A("  v_lshl_add_u32 v5, v4, 4, v5")
    A(f"  s_mul_i32 s7, s6, {INBOX_STRIDE}")
    A("  v_cmp_gt_u32 vcc, 9, v4")
    PDS = [16, 18, 20, 22, 24, 28, 30, 32]
    pd = lambda k: f"s[{PDS[k]}:{PDS[k]+1}]"
    for k in range(8): A(f"  s_mov_b64 {pd(k)}, vcc")
    A("  s_mov_b32 s80, s34"); A("  s_mov_b32 s81, s35"); A("  s_mov_b32 s82, 1152"); A("  s_mov_b32 s83, 0x20000")
    A("  s_mul_i32 s11, s4, 36")
    A("  v_lshlrev_b32 v1, 2, v4")
    A(f"  buffer_load_dword v10, v1, {B2}, s11 offen")
    A(f"  v_mov_b32 v6, {GATE}"); A("  ds_read_b32 v8, v6")
    A("  s_mov_b32 s88, s38"); A("  s_mov_b32 s89, s39"); A("  s_mov_b32 s90, 9216"); A("  s_mov_b32 s91, 0x20000")
    G = 40
    A("  s_mov_b32 s93, 0")
    A("L_poll:")
    for k in range(8):
        A(f"  s_mov_b64 exec, {pd(k)}")
        A(f"  s_cbranch_execz L_sk{k}")
        A(f"  buffer_load_dwordx4 v[{G+4*k}:{G+4*k+3}], v5, {WS}, s7 offen offset:{576*k} sc1")
        A(f"L_sk{k}:")
    A("  s_waitcnt vmcnt(0)")
    A("  s_mov_b64 s[10:11], 0")
    for k in range(8):
        A(f"  s_mov_b64 exec, {pd(k)}")
        A(f"  v_xor_b32 v{T}, s26, v{G+4*k+1}"); A(f"  v_xor_b32 v{T+1}, s27, v{G+4*k+3}"); A(f"  v_or_b32 v{T}, v{T}, v{T+1}")
        A(f"  v_cmp_ne_u32 {pd(k)}, 0, v{T}")
        A(f"  s_and_b64 {pd(k)}, {pd(k)}, exec")
        A(f"  s_or_b64 s[10:11], s[10:11], {pd(k)}")
    A("  s_cmp_eq_u64 s[10:11], 0")
    A("  s_cbranch_scc1 L_pdone")
    if poll_sleep: A(f"  s_sleep {poll_sleep}")
    A("  s_add_u32 s93, s93, 1"); A(f"  s_cmp_lt_u32 s93, {SPIN_MAX}")
    A("  s_cbranch_scc1 L_poll")
    A("L_pdone:")
    stamp(STR, 8)
    A("  s_mov_b64 exec, -1")
    for k in range(1, 8):
        A(f"  v_add_f32 v{G}, v{G}, v{G+4*k}"); A(f"  v_add_f32 v{G+2}, v{G+2}, v{G+4*k+2}")
    A(f"  v_permlane32_swap_b32 v{G}, v{G+2}")
    A(f"  v_add_f32 v{G}, v{G}, v{G+2}")
    A(f"  v_mov_b32 v{T}, v{G}"); A(f"  v_permlane16_swap_b32 v{G}, v{T}"); A(f"  v_add_f32 v{G}, v{G}, v{T}")
    A(f"  v_mov_b32 v{T}, v{G}"); A(f"  v_permlane32_swap_b32 v{G}, v{T}")
    A("  s_waitcnt lgkmcnt(0)")
    A("  v_sub_f32 v8, 1.0, v8")
    A(f"  v_lshlrev_b32 v{T+1}, 16, v10"); A(f"  v_and_b32 v{T+2}, {sMASK}, v10")
    A(f"  v_fmac_f32 v{G}, v8, v{T+1}"); A(f"  v_fmac_f32 v{T}, v8, v{T+2}")
    A(f"  v_cvt_pk_bf16_f32 v{G}, v{G}, v{T}")
    A("  s_mul_i32 s7, s5, 1152"); A("  s_mul_i32 s12, s4, 36"); A("  s_add_u32 s7, s7, s12")
    A("  s_mov_b64 exec, 0x1ff")
    A(f"  buffer_store_dword v{G}, v1, {OUT}, s7 offen")
    A("  s_cmp_lg_u32 s4, 0"); A("  s_cbranch_scc1 L_fin")
    A("  s_mov_b64 exec, 1")
    A("  s_lshl_b32 s7, s5, 7"); A(f"  s_add_u32 s7, s7, {EPOCH_OFF}")
    A("  v_mov_b32 v5, s26"); A("  v_mov_b32 v6, 0")
    A(f"  buffer_store_dword v5, v6, {WS}, s7 offen")
    A("L_fin:")
    if stamps:
        A("  s_mov_b64 exec, 1")
        A("  s_memrealtime s[12:13]")
        A("  s_waitcnt lgkmcnt(0) vmcnt(0)")
        A("  s_and_b32 s7, s3, 3"); A("  s_cmp_lg_u32 s7, 0"); A("  s_cbranch_scc1 L_end")
        A("  s_lshl_b32 s7, s2, 8"); A("  s_add_u32 s7, s7, 0x20000000")
        A("  s_lshl_b32 s10, s3, 5"); A("  s_add_u32 s7, s7, s10")
        A("  v_mov_b32 v1, 0")
        A("  v_mov_b32 v4, s98"); A("  v_mov_b32 v5, s99"); A("  v_mov_b32 v6, s12"); A("  v_mov_b32 v7, s13")
        A(f"  buffer_store_dwordx4 v[4:7], v1, {WS}, s7 offen")
        A("  s_getreg_b32 s13, hwreg(HW_REG_XCC_ID)")
        A("  v_mov_b32 v8, s13"); A("  v_mov_b32 v9, 0"); A("  v_mov_b32 v10, s100"); A("  v_mov_b32 v11, s101")
        A(f"  buffer_store_dwordx4 v[8:11], v1, {WS}, s7 offen offset:16")
        A("  s_cmp_lg_u32 s3, 0"); A("  s_cbranch_scc1 L_sth")
        for i, r in enumerate(STR):
            A(f"  v_mov_b32 v12, s{r}"); A(f"  v_mov_b32 v13, s{r+1}")
            A(f"  buffer_store_dwordx2 v[12:13], v1, {WS}, s7 offen offset:{32+8*i}")
            A("  s_nop 1")
        A("  s_branch L_end")
        A("L_sth:")
        for i, r in enumerate(STH[:4]):
            A(f"  v_mov_b32 v12, s{r}"); A(f"  v_mov_b32 v13, s{r+1}")
            A(f"  buffer_store_dwordx2 v[12:13], v1, {WS}, s7 offen offset:{32+8*i}")
            A("  s_nop 1")
    A("L_end:")
    A("  s_endpgm")
    A('.section .rodata,"a"'); A(".p2align 6"); A(f".amdhsa_kernel {KN}")
    A("  .amdhsa_next_free_vgpr 256"); A("  .amdhsa_next_free_sgpr 102"); A("  .amdhsa_accum_offset 256")
    A("  .amdhsa_group_segment_fixed_size 0"); A("  .amdhsa_kernarg_size 112"); A("  .amdhsa_user_sgpr_count 2")
    A("  .amdhsa_user_sgpr_kernarg_segment_ptr 1"); A("  .amdhsa_system_sgpr_workgroup_id_x 1"); A(".end_amdhsa_kernel")
    return A.fix()

if __name__ == "__main__":
    import argparse
    ap = argparse.ArgumentParser()
    ap.add_argument("-o", default="k.s")
    for n, d in [("R", 5), ("HRW", 2), ("H2", 2), ("HWO", 4), ("RB", 0), ("NB", 0), ("EK", 1), ("EBAR", 4), ("poll_sleep", 2), ("adapt", 0), ("WQW", 16), ("touch", 0), ("map2", 0), ("noproto", 0), ("theta", 1), ("csleep", 8), ("pstop", 28)]:
        ap.add_argument("--" + n, type=int, default=d)
    ap.add_argument("--stamps", action="store_true"); ap.add_argument("--dbg", action="store_true"); ap.add_argument("--prio", action="store_true"); ap.add_argument("--norot", action="store_true"); ap.add_argument("--hfake", action="store_true"); ap.add_argument("--skiph", action="store_true")
    ap.add_argument("--wflags", default=""); ap.add_argument("--kflags", default="nt"); ap.add_argument("--vflags", default="nt")
    a = ap.parse_args()
    kw = vars(a).copy(); o = kw.pop("o"); kw["rot"] = not kw.pop("norot")
    if kw["RB"] == 0: kw["RB"] = None
    open(o, "w").write(gen(**kw))
    print("wrote", o)
```

```python
import sys, math, struct
from asmlib import Asm

KN = "gated_mix__mha_block_cached__mixer_channel_mlp__decode_kernel"
HEADER = open("gated_mix__mha_block_cached__mixer_channel_mlp__decode.s.ref").read().split("; Override launch")[0]
f2u = lambda x: "0x%08x" % struct.unpack("<I", struct.pack("<f", x))[0]

QP   = 0
OP   = 2048
SC   = 4096
ML   = SC + 4 * 4096 + 256
GATE = ML + 32
HCNT = GATE + 4
PRG  = ML + 48
YL   = ML + 96
HP   = YL + 2560
OUTP = HP + 6912
LDS_TOTAL = OUTP + 9216
TAG = 0x5AFE1234
SPIN_MAX = 100000
EPOCH_OFF = 0x300000
PROG_OFF = 0x200000
INBOX_STRIDE = 5120

class Q:
    def __init__(self, items=None): self.q = list(items or [])
    def issue(self, x): self.q.append(x)
    def wait_for(self, x):
        if x not in self.q: return None
        i = self.q.index(x)
        n = len(self.q) - 1 - i
        self.q = self.q[i + 1:]
        return n

def gen(R=5, kflags="nt", vflags="nt", wflags="", stamps=False, dbg=False, HRW=2, H2=2, HWO=4, RB=None, NB=0, EK=1, EBAR=4,
        poll_sleep=2, prio=False, rot=True, hfake=False, skiph=False, pf=0, pfflags='', WQW=16, touch=0, map2=0, noproto=0, adapt=0, theta=1, csleep=8, pstop=28):
    A = Asm()
    S = 16
    NPRE = 32
    STR = [56, 58, 60, 62, 64, 66, 68, 70, 72]
    STH = [44, 46, 56, 58, 8]
    def stamp(regs, i):
        if stamps:
            A(f"  s_memrealtime s[{regs[i]}:{regs[i]+1}]"); A("  s_waitcnt lgkmcnt(0)")
    A(HEADER.rstrip())
    A(f"; @launch grid=(256,1,1) block=(512,1,1) lds={LDS_TOTAL}")
    A('.amdgcn_target "amdgcn-amd-amdhsa--gfx950"')
    A(".text"); A(f".globl {KN}"); A(".p2align 8"); A(f".type {KN},@function"); A(f"{KN}:")
    KV = "s[44:47]"; WQ = "s[48:51]"; XA = "s[52:55]"; GW = "s[60:63]"; W1 = "s[64:67]"
    B1 = "s[68:71]"; W2 = "s[72:75]"; WO = "s[76:79]"; B2 = "s[80:83]"; WS = "s[84:87]"; OUT = "s[88:91]"
    sMASK = "s92"; sM2 = "s[94:95]"; sM1 = "s[96:97]"
    ACC = 8; T = 16
    RING = 24; PRE = 88; SCR = 216; Qr = 232
    vP, vPn, vSC, vRG = "v236", "v237", "v238", "v239"
    AV = 240
    vMX, vLS, vNM = "v248", "v249", "v250"
    WT = 24; HRING = 168; HS = 200; OA = 216; HX = 232
    vG_, v1mG, vZ = "v246", "v247", "v248"
    ring = lambda s: f"v[{RING+4*(s%S)}:{RING+4*(s%S)+3}]"
    pre = lambda t: f"v[{PRE+4*t}:{PRE+4*t+3}]"
    wt = lambda i: f"v[{WT+4*i}:{WT+4*i+3}]"
    ktile = lambda t: pre(t) if t < NPRE else ring(t)
    t0, t1 = f"v{T}", f"v{T+1}"

    A("  s_cmp_ge_u32 s2, 256")
    A("  s_cbranch_scc1 L_end")
    A("  s_load_dwordx16 s[16:31], s[0:1], 0")
    A("  s_load_dwordx8 s[32:39], s[0:1], 64")
    A("  s_load_dwordx4 s[40:43], s[0:1], 96")
    if stamps: A("  s_memrealtime s[98:99]")
    A("  v_lshrrev_b32 v1, 6, v0")
    A("  v_and_b32 v0, 63, v0")
    A("  v_lshlrev_b32 v2, 4, v0")
    A("  v_readfirstlane_b32 s3, v1")
    A("  s_and_b32 s4, s2, 7")
    A("  s_lshl_b32 s4, s4, 2")
    if map2:
        A("  s_bfe_u32 s7, s2, 0x20006")
        A("  s_or_b32 s4, s4, s7")
        A("  s_bfe_u32 s5, s2, 0x30003")
    else:
        A("  s_bfe_u32 s7, s2, 0x20003")
        A("  s_or_b32 s4, s4, s7")
        A("  s_lshr_b32 s5, s2, 5")
    A("  s_lshl_b32 s6, s5, 5")
    A("  s_or_b32 s6, s6, s4")
    A("  s_lshl_b32 s9, s6, 20")
    A("  s_lshl_b32 s13, s3, 10")
    A("  s_mov_b32 s46, 0x100000"); A("  s_mov_b32 s47, 0x20000")
    A("  v_lshrrev_b32 v3, 4, v0")
    A("  v_and_b32 v4, 15, v0")
    A("  s_mov_b32 s92, 0xffff0000")
    A("  s_mov_b32 s8, s13")
    A("  s_cmp_ge_u32 s3, 4")
    A("  s_cbranch_scc1 L_helper")
    q = Q()
    def kissue(t, flags):
        A(f"  buffer_load_dwordx4 {ktile(t) if t < 48 else ring(t)}, v2, {KV}, s8 offen {flags}")
        A("  s_addk_i32 s8, 4096")
        q.issue(t)
    def kwait(t):
        n = q.wait_for(t)
        if n is not None: A(f"  s_waitcnt vmcnt({n})")
    A("  s_waitcnt lgkmcnt(0)")
    A("  s_add_u32 s44, s18, s9"); A("  s_addc_u32 s45, s19, 0")
    for t in range(R): kissue(t, kflags)
    A("  s_lshl_b32 s7, s5, 7"); A(f"  s_add_u32 s7, s7, {EPOCH_OFF}")
    A("  s_load_dword s26, s[42:43], s7")
    if adapt:
        A("  s_and_b32 s19, s2, 7"); A("  s_lshl_b32 s19, s19, 8"); A(f"  s_add_u32 s19, s19, {PROG_OFF}")
        A("  s_load_dword s18, s[42:43], s19")
    if prio: A("  s_setprio 2")
    A("  s_add_u32 s14, s20, s9"); A("  s_addc_u32 s15, s21, 0")
    if touch & 1:
        A("  v_lshlrev_b32 v1, 14, v0"); A("  s_lshl_b32 s7, s3, 12"); A("  v_add_u32 v1, s7, v1")
        A("  global_load_dword v255, v1, s[14:15] nt")
        q.issue("touchV")
    A("  v_and_b32 v1, 2, v0"); A(f"  v_cmp_ne_u32 {sM2}, 0, v1")
    A("  v_and_b32 v1, 1, v0"); A(f"  v_cmp_ne_u32 {sM1}, 0, v1")
    A("  v_lshlrev_b32 v5, 5, v4"); A("  v_lshl_add_u32 v5, v3, 3, v5")
    A("  s_lshl_b32 s7, s3, 9"); A(f"  v_add_u32 {vRG}, s7, v5")
    A("  s_lshl_b32 s7, s3, 12"); A(f"  v_lshl_add_u32 {vSC}, v0, 2, s7")
    for k in range(8): A(f"  v_mov_b32 v{AV+k}, 0")
    A(f"  v_mov_b32 {vMX}, 0xff800000"); A(f"  v_mov_b32 {vLS}, 0")
    last_paced = 47 - EBAR
    for t in range(last_paced - R + 1):
        kwait(t); kissue(t + R, kflags)
    stamp(STR, 4)
    A("  s_barrier")
    for t in range(last_paced + 1, 48): kissue(t, kflags)
    A("  v_lshlrev_b32 v5, 5, v4")
    for w in range(2):
        A(f"  ds_read_b128 v[{SCR+8*w}:{SCR+8*w+3}], v5 offset:{QP+512*w}")
        A(f"  ds_read_b128 v[{SCR+8*w+4}:{SCR+8*w+7}], v5 offset:{QP+512*w+16}")
    A(f"  ds_read_b128 v[{ACC}:{ACC+3}], v5 offset:{QP+1024}")
    A(f"  ds_read_b128 v[{ACC+4}:{ACC+7}], v5 offset:{QP+1024+16}")
    A(f"  ds_read_b128 v[{T}:{T+3}], v5 offset:{QP+1536}")
    A(f"  ds_read_b128 v[{T+4}:{T+7}], v5 offset:{QP+1536+16}")
    A("  s_waitcnt lgkmcnt(0)")
    for k in range(8):
        A(f"  v_add_f32 v{SCR+k}, v{SCR+k}, v{SCR+8+k}")
        A(f"  v_add_f32 v{ACC+k}, v{ACC+k}, v{T+k}")
    for k in range(8): A(f"  v_add_f32 v{SCR+k}, v{SCR+k}, v{ACC+k}")
    for k in range(4): A(f"  v_cvt_pk_bf16_f32 v{Qr+k}, v{SCR+2*k}, v{SCR+2*k+1}")
    if dbg:
        A("  s_cmp_lg_u32 s3, 0"); A("  s_cbranch_scc1 L_dq")
        A("  s_mov_b32 s84, s42"); A("  s_mov_b32 s85, s43"); A("  s_mov_b32 s86, 0x40000000"); A("  s_mov_b32 s87, 0x20000")
        A("  s_lshl_b32 s7, s6, 8"); A("  s_add_u32 s7, s7, 0x30000000")
        A("  v_lshlrev_b32 v1, 4, v4")
        A(f"  buffer_store_dwordx4 v[{Qr}:{Qr+3}], v1, {WS}, s7 offen")
        A("  s_waitcnt vmcnt(0)")
        A("L_dq:")
    stamp(STR, 0)
    a = lambda i: f"v{SCR+i}"
    def kdots(u, r):
        for k in range(4):
            c = "0" if k == 0 else a(u)
            A(f"  v_dot2_f32_bf16 {a(u)}, v{r+k}, v{Qr+k}, {c}")
    def kreduce():
        for i in range(8):
            A(f"  v_add_f32_dpp {a(i)}, {a(i)}, {a(i)} row_ror:8 row_mask:0xf bank_mask:0x3")
            A(f"  v_add_f32_dpp {a(i)}, {a(i+8)}, {a(i+8)} row_ror:8 row_mask:0xf bank_mask:0xc")
        for i in range(4):
            A(f"  v_add_f32_dpp {a(i)}, {a(i)}, {a(i)} row_shl:4 row_mask:0xf bank_mask:0x5")
            A(f"  v_add_f32_dpp {a(i)}, {a(i+4)}, {a(i+4)} row_shr:4 row_mask:0xf bank_mask:0xa")
        for i in range(2):
            A(f"  v_cndmask_b32 v{T+i}, {a(i)}, {a(i+2)}, {sM2}")
            A(f"  v_cndmask_b32 v{T+2+i}, {a(i+2)}, {a(i)}, {sM2}")
        for i in range(2):
            A(f"  v_add_f32_dpp v{T+i}, v{T+2+i}, v{T+i} quad_perm:[2,3,0,1] row_mask:0xf bank_mask:0xf")
        A(f"  v_cndmask_b32 v{T+4}, v{T}, v{T+1}, {sM1}")
        A(f"  v_cndmask_b32 v{T+5}, v{T+1}, v{T}, {sM1}")
        A(f"  v_add_f32_dpp v{T+4}, v{T+5}, v{T+4} quad_perm:[1,0,3,2] row_mask:0xf bank_mask:0xf")
        A(f"  ds_write_b32 {vSC}, v{T+4} offset:{SC}")
        A(f"  v_max_f32 {vMX}, {vMX}, v{T+4}")
        A(f"  v_add_u32 {vSC}, 256, {vSC}")
    for blk in range(2):
        for u in range(16): kdots(u, PRE + 4 * (16 * blk + u))
        kreduce()
    nxt = 48
    for u in range(16):
        t = 32 + u
        kwait(t)
        want = t + R + (EK if u == 15 else 0)
        while nxt <= want:
            kissue(nxt, kflags); nxt += 1
        kdots(u, RING + 4 * (u % S))
    kreduce()
    entry_state = [x - 48 for x in q.q]
    A("  s_mov_b32 s12, 3")
    A("L_kloop:")
    if stamps:
        A("  s_cmp_lg_u32 s12, 9"); A("  s_cbranch_scc1 L_nomid")
        A(f"  s_memrealtime s[{STR[5]}:{STR[5]+1}]"); A("  s_waitcnt lgkmcnt(0)")
        A("L_nomid:")
    q = Q(entry_state); nxt = R + EK
    def kissue2(t, flags):
        if t == 16:
            A("  s_cmp_eq_u32 s12, 15")
            A("  s_cselect_b32 s44, s14, s44"); A("  s_cselect_b32 s45, s15, s45"); A("  s_cselect_b32 s8, s13, s8")
        A(f"  buffer_load_dwordx4 {ring(t)}, v2, {KV}, s8 offen {flags}")
        A("  s_addk_i32 s8, 4096")
        q.issue(t)
    for u in range(16):
        kwait(u)
        want = u + R + (EK if u == 15 else 0)
        while nxt <= want:
            kissue2(nxt, kflags); nxt += 1
        kdots(u, RING + 4 * (u % S))
    kreduce()
    assert [x - 16 for x in q.q] == entry_state, (q.q, entry_state)
    A("  s_add_u32 s12, s12, 1")
    A("  s_cmp_lt_u32 s12, 16")
    A("  s_cbranch_scc1 L_kloop")
    stamp(STR, 1)
    A(f"  v_subrev_u32 {vSC}, 4096, {vSC}")
    A(f"  ds_read_b32 {vPn}, {vSC} offset:{SC}")
    def allreduce(op, v, tmp):
        for sh in (8, 4, 2, 1):
            A(f"  {op}_dpp {v}, {v}, {v} row_ror:{sh} row_mask:0xf bank_mask:0xf")
        A(f"  v_mov_b32 {tmp}, {v}"); A(f"  v_permlane16_swap_b32 {v}, {tmp}"); A(f"  {op} {v}, {v}, {tmp}")
        A(f"  v_mov_b32 {tmp}, {v}"); A(f"  v_permlane32_swap_b32 {v}, {tmp}"); A(f"  {op} {v}, {v}, {tmp}")
    allreduce("v_max_f32", vMX, t1)
    SC2 = (128 ** -0.5) * math.log2(math.e)
    A(f"  s_mov_b32 s7, {f2u(SC2)}")
    A(f"  v_mul_f32 {vMX}, s7, {vMX}")
    if dbg:
        A("  s_mov_b32 s84, s42"); A("  s_mov_b32 s85, s43"); A("  s_mov_b32 s86, 0x40000000"); A("  s_mov_b32 s87, 0x20000")
        A("  s_lshl_b32 s10, s6, 2"); A("  s_add_u32 s10, s10, s3"); A("  s_lshl_b32 s10, s10, 12"); A("  s_add_u32 s10, s10, 0x31000000")
        A("  v_lshlrev_b32 v1, 2, v0")
        for i in range(16): A(f"  ds_read_b32 {a(i)}, {vSC} offset:{SC+256*i}")
        A("  s_waitcnt lgkmcnt(0)")
        for i in range(16): A(f"  buffer_store_dword {a(i)}, v1, {WS}, s10 offen offset:{256*i}")
        A("  s_waitcnt vmcnt(0)")
    A("  s_waitcnt lgkmcnt(0)")
    A(f"  v_fma_f32 {vP}, {vPn}, s7, -{vMX}")
    A(f"  v_exp_f32 {vP}, {vP}")
    A("  s_mov_b32 s12, 0")
    stamp(STR, 2)
    def unpack(r):
        for k in range(4):
            A(f"  v_lshlrev_b32 v{T+2*k}, 16, v{r+k}")
            A(f"  v_and_b32 v{T+2*k+1}, {sMASK}, v{r+k}")
    def vloop(Rx, state, extra_first, lab, nend):
        D = adapt if adapt else Rx
        qq = Q(state)
        n = max(state) + 1
        while n < D:
            A(f"  buffer_load_dwordx4 {ring(n)}, v2, {KV}, s8 offen {vflags}"); A("  s_addk_i32 s8, 4096"); qq.issue(n); n += 1
        steady = list(range(D))
        cnt = [0]
        def body(qq, n):
            cnt[0] += 1
            A(f"  v_add_u32 {vSC}, 256, {vSC}")
            A(f"  ds_read_b32 {vPn}, {vSC} offset:{SC}")
            if adapt:
                A(f"  ds_read_b32 v251, v252 offset:{PRG+16}")
            A(f"  v_add_f32 {vLS}, {vLS}, {vP}")
            for u in range(16):
                w = qq.wait_for(u)
                if w is not None: A(f"  s_waitcnt vmcnt({w})")
                while n <= u + D:
                    if adapt:
                        A(f"  s_cbranch_vccnz {lab}_h{cnt[0]}_{u}")
                        A(f"  s_waitcnt vmcnt({Rx-1})")
                        A(f"{lab}_h{cnt[0]}_{u}:")
                    A(f"  buffer_load_dwordx4 {ring(n)}, v2, {KV}, s8 offen {vflags}"); A("  s_addk_i32 s8, 4096"); qq.issue(n); n += 1
                unpack(RING + 4 * (u % S))
                for k in range(8):
                    A(f"  v_fmac_f32_dpp v{AV+k}, {vP}, v{T+k} row_newbcast:{u} row_mask:0xf bank_mask:0xf")
                if u == 8:
                    A("  s_waitcnt lgkmcnt(0)")
                    A(f"  v_fma_f32 {vPn}, {vPn}, s7, -{vMX}")
                    A(f"  v_exp_f32 {vPn}, {vPn}")
                    if adapt:
                        A("  v_readfirstlane_b32 s10, v251")
                        A("  s_cmp_lg_u32 s3, 0")
                        A(f"  s_cbranch_scc1 {lab}_nc{cnt[0]}")
                        A("  s_bitcmp1_b32 s12, 0")
                        A(f"  s_cbranch_scc1 {lab}_od{cnt[0]}")
                        A("  s_mov_b32 s16, 2")
                        A("  s_atomic_add s16, s[42:43], s19 glc")
                        A(f"  s_branch {lab}_nc{cnt[0]}")
                        A(f"{lab}_od{cnt[0]}:")
                        A("  s_sub_u32 s16, s16, s18")
                        A(f"  s_lshl_b32 s17, s12, 5"); A(f"  s_add_u32 s17, s17, {theta}")
                        A("  s_cmp_lt_u32 s17, s16")
                        A("  s_cselect_b32 s17, 1, 0")
                        A("  v_mov_b32 v253, s17")
                        A(f"  ds_write_b32 v252, v253 offset:{PRG+16}")
                        A(f"{lab}_nc{cnt[0]}:")
                        A("  s_cmp_lg_u32 s10, 0")
                        A("  s_cselect_b64 vcc, -1, 0")
            A(f"  v_mov_b32 {vP}, {vPn}")
            A("  s_add_u32 s12, s12, 1")
            return [x - 16 for x in qq.q]
        if qq.q != steady:
            st = body(qq, n)
            assert st == steady, (st, steady)
        A(f"{lab}:")
        st = body(Q(steady), D)
        assert st == steady
        A(f"  s_cmp_lt_u32 s12, {nend}")
        A(f"  s_cbranch_scc1 {lab}")
        return steady
    if adapt:
        A("  s_mov_b64 vcc, 0")
        A("  v_mov_b32 v252, 0"); A("  s_mov_b32 s16, 0")
    st = entry_state
    if RB is None or NB == 0:
        vloop(R, st, 0, "L_vloopA", 16)
    elif NB >= 16:
        vloop(RB, st, 0, "L_vloopA", 16)
    else:
        st = vloop(R, st, 0, "L_vloopA", 16 - NB)
        vloop(RB, st, 0, "L_vloopB", 16)
    stamp(STR, 3)
    def reduce_g(a_):
        for j in range(4): A(f"  v_permlane32_swap_b32 v{a_+j}, v{a_+j+4}")
        for j in range(4): A(f"  v_add_f32 v{a_+j}, v{a_+j}, v{a_+j+4}")
        for j in range(2): A(f"  v_permlane16_swap_b32 v{a_+j}, v{a_+j+2}")
        for j in range(2): A(f"  v_add_f32 v{a_+j}, v{a_+j}, v{a_+j+2}")
    reduce_g(AV)
    A(f"  ds_write_b64 {vRG}, v[{AV}:{AV+1}] offset:{OP}")
    allreduce("v_add_f32", vLS, t1)
    A(f"  v_mov_b32 v{T+2}, {vMX}"); A(f"  v_mov_b32 v{T+3}, {vLS}")
    A("  s_lshl_b32 s7, s3, 3"); A("  v_mov_b32 v1, s7")
    A(f"  ds_write_b64 v1, v[{T+2}:{T+3}] offset:{ML}")
    A("  s_waitcnt lgkmcnt(0)")
    A("  s_barrier")
    A("  s_barrier")
    A("  s_branch L_final")

    A("L_helper:")
    A("  s_sub_u32 s12, s3, 4")
    A("  s_mul_i32 s7, s5, 1152")
    A("  s_mul_i32 s14, s5, 9"); A("  s_lshr_b32 s14, s14, 1")
    if not rot: A("  s_mov_b32 s14, 0")
    for k in range(3):
        A(f"  s_add_u32 s15, s14, {16*k}")
        A(f"  v_add_u32 v{6+k}, s15, v4")
        A(f"  v_subrev_u32 v5, 36, v{6+k}")
        A(f"  v_min_u32 v{6+k}, v{6+k}, v5")
        A(f"  v_lshlrev_b32 v{6+k}, 3, v{6+k}")
        A(f"  v_lshl_add_u32 v{6+k}, v3, 1, v{6+k}")
    A("  v_lshlrev_b32 v1, 4, v4"); A("  v_lshl_add_u32 v1, v3, 13, v1")
    A(f"  s_mul_i32 s10, s12, {144*8192}"); A("  s_lshl_b32 s11, s4, 8"); A("  s_add_u32 s10, s10, s11")
    A(f"  s_add_u32 s15, s10, {36*32768}")
    A("  s_mov_b32 s9, s10")
    A("  s_lshl_b32 s14, s14, 15"); A("  s_add_u32 s10, s10, s14")
    A("  s_mul_i32 s11, s12, 288")
    A(f"  s_mov_b32 s50, {576*8192}"); A("  s_mov_b32 s51, 0x20000")
    A("  s_mov_b32 s54, 1152"); A("  s_mov_b32 s55, 0x20000")
    A("  s_waitcnt lgkmcnt(0)")
    A("  s_add_u32 s52, s16, s7"); A("  s_addc_u32 s53, s17, 0")
    A("  s_lshl_b32 s7, s5, 7"); A(f"  s_add_u32 s7, s7, {EPOCH_OFF}")
    A("  s_load_dword s26, s[42:43], s7")
    A("  s_mov_b32 s48, s22"); A("  s_mov_b32 s49, s23")
    for k in range(3): A(f"  buffer_load_ushort v{6+k}, v{6+k}, {XA}, s11 offen")
    if touch & 2:
        A("  v_mul_u32_u24 v255, 82944, v0")
        A("  s_mul_i32 s7, s4, 288"); A("  v_add_u32 v255, s7, v255")
        A("  global_load_dword v254, v255, s[28:29]")
        A("  v_mul_u32_u24 v255, 2592, v0"); A(f"  s_mul_i32 s7, s4, {144*1152}"); A("  v_add_u32 v255, s7, v255")
        A("  global_load_dword v253, v255, s[32:33]")
        A("  v_mul_u32_u24 v255, 2304, v0"); A(f"  s_mul_i32 s7, s4, {128*1152}"); A("  v_add_u32 v255, s7, v255")
        A("  global_load_dword v252, v255, s[24:25]")
    hq = Q(["x0", "x1", "x2"] + (["t0", "t1", "t2"] if touch & 2 else []))
    def wq_issue(i):
        A(f"  buffer_load_dwordx4 {wt(i)}, v1, {WQ}, s10 offen {wflags}")
        hq.issue(i)
        if i < 35:
            A("  s_add_u32 s10, s10, 32768")
            A("  s_cmp_eq_u32 s10, s15"); A("  s_cselect_b32 s10, s9, s10")
    for i in range(WQW): wq_issue(i)
    A("  s_mov_b32 s76, s24"); A("  s_mov_b32 s77, s25"); A(f"  s_mov_b32 s78, {4096*1152}"); A("  s_mov_b32 s79, 0x20000")
    A("  s_mov_b32 s84, s42"); A("  s_mov_b32 s85, s43"); A("  s_mov_b32 s86, 0x40000000"); A("  s_mov_b32 s87, 0x20000")
    A("  s_mov_b32 s60, s36"); A("  s_mov_b32 s61, s37"); A("  s_mov_b32 s62, 1152"); A("  s_mov_b32 s63, 0x20000")
    A("  s_mov_b32 s68, s30"); A("  s_mov_b32 s69, s31"); A("  s_mov_b32 s70, 9216"); A("  s_mov_b32 s71, 0x20000")
    for k in range(16): A(f"  v_mov_b32 v{OA+k}, 0")
    A(f"  s_waitcnt vmcnt({hq.wait_for('x2')})")
    stamp(STH, 3)
    for k in range(3): A(f"  v_lshlrev_b32 v{6+k}, 16, v{6+k}")
    QA = HS
    def small_loads():
        A("  v_lshlrev_b32 v5, 2, v0")
        for k in range(5): A(f"  buffer_load_dword v{HX+k}, v5, {XA}, 0 offen offset:{256*k}"); hq.issue(("s", k))
        for k in range(5): A(f"  buffer_load_dword v{HX+5+k}, v5, {GW}, 0 offen offset:{256*k}"); hq.issue(("s", 5 + k))
        A("  s_mul_i32 s7, s4, 288"); A("  s_mul_i32 s11, s12, 72"); A("  s_add_u32 s7, s7, s11")
        A("  v_lshlrev_b32 v5, 1, v0")
        A(f"  buffer_load_ushort v{HX+10}, v5, {B1}, s7 offen"); hq.issue(("s", 10))
    for i in range(36):
        w = hq.wait_for(i)
        if w is not None: A(f"  s_waitcnt vmcnt({w})")
        if i + WQW < 36: wq_issue(i + WQW)
        if i + WQW == 36: small_loads()
        unpack(WT + 4 * i)
        src = f"v{6 + i // 16}"
        for k in range(8):
            op = "v_mul_f32_dpp" if i == 0 else "v_fmac_f32_dpp"
            A(f"  {op} v{QA+k}, {src}, v{T+k} row_newbcast:{i%16} row_mask:0xf bank_mask:0xf")
    reduce_g(QA)
    A("  v_lshlrev_b32 v5, 5, v4"); A("  v_lshl_add_u32 v5, v3, 3, v5")
    A("  s_lshl_b32 s7, s12, 9"); A("  v_add_u32 v5, s7, v5")
    A(f"  ds_write_b64 v5, v[{QA}:{QA+1}] offset:{QP}")
    A("  v_mov_b32 v1, 0"); A(f"  v_mov_b32 v5, {HCNT}")
    A("  ds_write_b32 v5, v1")
    if adapt:
        A(f"  v_mov_b32 v5, {PRG}")
        for k in range(5): A(f"  ds_write_b32 v5, v1 offset:{4*k}")
    A("  s_waitcnt lgkmcnt(0)")
    stamp(STH, 2)
    A("  s_barrier")
    X = HS
    A("  s_waitcnt vmcnt(0)")
    for k in range(5):
        A(f"  v_lshlrev_b32 v{X+2*k}, 16, v{HX+k}")
        A(f"  v_and_b32 v{X+2*k+1}, {sMASK}, v{HX+k}")
    A(f"  v_add_f32 {t0}, v{X}, v{X+1}")
    for k in range(2, 10): A(f"  v_add_f32 {t0}, {t0}, v{X+k}")
    allreduce("v_add_f32", t0, t1)
    A(f"  v_mul_f32 {t0}, {f2u(1.0/576)}, {t0}")
    for k in range(10): A(f"  v_sub_f32 v{X+k}, v{X+k}, {t0}")
    A("  v_cmp_gt_u32 vcc, 32, v0")
    A(f"  v_cndmask_b32 v{X+8}, 0, v{X+8}, vcc"); A(f"  v_cndmask_b32 v{X+9}, 0, v{X+9}, vcc")
    A(f"  v_mul_f32 {t0}, v{X}, v{X}")
    for k in range(1, 10): A(f"  v_fmac_f32 {t0}, v{X+k}, v{X+k}")
    allreduce("v_add_f32", t0, t1)
    A(f"  v_mov_b32 {t1}, {f2u(1e-5)}")
    A(f"  v_fmac_f32 {t1}, {f2u(1.0/576)}, {t0}")
    A(f"  v_rsq_f32 {t1}, {t1}")
    for k in range(10): A(f"  v_mul_f32 v{X+k}, v{X+k}, {t1}")
    A("  v_lshlrev_b32 v1, 3, v0")
    for k in range(5): A(f"  ds_write_b64 v1, v[{X+2*k}:{X+2*k+1}] offset:{YL+512*k}")
    A(f"  v_dot2_f32_bf16 {t0}, v{HX}, v{HX+5}, 0")
    for k in range(1, 5): A(f"  v_dot2_f32_bf16 {t0}, v{HX+k}, v{HX+5+k}, {t0}")
    allreduce("v_add_f32", t0, t1)
    A(f"  v_mul_f32 {t0}, {f2u(-math.log2(math.e))}, {t0}")
    A(f"  v_exp_f32 {t0}, {t0}")
    A(f"  v_add_f32 {t0}, 1.0, {t0}")
    A(f"  v_rcp_f32 {vG_}, {t0}")
    A(f"  v_sub_f32 {v1mG}, 1.0, {vG_}")
    A(f"  v_mov_b32 v1, {GATE}")
    A(f"  ds_write_b32 v1, {vG_}")
    if skiph: A("  s_branch L_rdy0")
    if pf:
        A("  s_mov_b32 s64, s28"); A("  s_mov_b32 s65, s29"); A(f"  s_mov_b32 s66, {576*9216}"); A("  s_mov_b32 s67, 0x20000")
        A("  s_mov_b32 s72, s32"); A("  s_mov_b32 s73, s33"); A(f"  s_mov_b32 s74, {4608*1152}"); A("  s_mov_b32 s75, 0x20000")
        n = 0
        for srd, per, nld in ((W1, 20736, 21), (W2, 20736, 21), (WO, 18432, 18)):
            A(f"  s_mul_i32 s10, s2, {per}"); A("  s_lshl_b32 s11, s12, 10"); A("  s_add_u32 s10, s10, s11")
            for k in range((nld + 3) // 4):
                if n >= pf: A(f"  s_waitcnt vmcnt({pf-1})")
                A(f"  buffer_load_dwordx4 v[{HRING}:{HRING+3}], v2, {srd}, s10 offen {pfflags}")
                A("  s_addk_i32 s10, 4096"); n += 1
        A("  s_waitcnt vmcnt(0)")
    A("  v_mul_u32_u24 v5, 57, v0"); A("  v_lshrrev_b32 v5, 10, v5")
    A("  v_mul_u32_u24 v6, 18, v5"); A("  v_sub_u32 v6, v0, v6")
    A("  v_mul_u32_u24 v7, 9216, v5"); A("  v_lshl_add_u32 v7, v6, 4, v7")
    A("  s_mov_b32 s64, s28"); A("  s_mov_b32 s65, s29"); A(f"  s_mov_b32 s66, {576*9216}"); A("  s_mov_b32 s67, 0x20000")
    A(f"  s_mul_i32 s10, s12, {144*9216}"); A("  s_mul_i32 s11, s4, 288"); A("  s_add_u32 s10, s10, s11")
    A("  s_mul_i32 s11, s12, 576")
    A("  v_lshl_add_u32 v1, v5, 2, s11")
    hring = lambda s: f"v[{HRING+4*s}:{HRING+4*s+3}]"
    for u in range(HRW):
        A(f"  buffer_load_dwordx4 {hring(u)}, v7, {W1}, s10 offen {wflags}")
        A("  s_add_u32 s10, s10, %d" % (0 if hfake else 27648))
    for k in range(8): A(f"  v_mov_b32 v{ACC+k}, 0")
    A("  s_mov_b32 s11, 0")
    A("  s_waitcnt lgkmcnt(0)")
    A("L_w1:")
    for u in range(HRW): A(f"  ds_read_b32 v{HS+u}, v1 offset:{YL+12*u}")
    A(f"  v_add_u32 v1, {12*HRW}, v1")
    A(f"  s_cmp_eq_u32 s11, {48//HRW-1}")
    A("  s_cselect_b32 s10, 0x40000000, s10")
    A("  s_waitcnt lgkmcnt(0)")
    for u in range(HRW):
        A(f"  s_waitcnt vmcnt({HRW-1})")
        unpack(HRING + 4 * u)
        A(f"  buffer_load_dwordx4 {hring(u)}, v7, {W1}, s10 offen {wflags}")
        A("  s_add_u32 s10, s10, %d" % (0 if hfake else 27648))
        for k in range(8): A(f"  v_fmac_f32 v{ACC+k}, v{HS+u}, v{T+k}")
    A("  s_add_u32 s11, s11, 1")
    A(f"  s_cmp_lt_u32 s11, {48//HRW}")
    A("  s_cbranch_scc1 L_w1")
    stamp(STH, 0)
    A("  s_mul_i32 s11, s12, 3")
    A("  v_add_u32 v1, s11, v5"); A("  v_mul_u32_u24 v1, 576, v1"); A("  v_lshl_add_u32 v1, v6, 5, v1")
    A("  v_cmp_gt_u32 vcc, 54, v0")
    A("  s_and_saveexec_b64 s[10:11], vcc")
    A(f"  ds_write_b128 v1, v[{ACC}:{ACC+3}] offset:{HP}")
    A(f"  ds_write_b128 v1, v[{ACC+4}:{ACC+7}] offset:{HP+16}")
    A("  s_mov_b64 exec, 1")
    A(f"  v_mov_b32 v1, {HCNT}"); A("  v_mov_b32 v5, 1")
    A("  ds_add_u32 v1, v5")
    A("  s_mov_b64 exec, -1")
    A(f"  v_mov_b32 v1, {HCNT}")
    A("  s_mov_b32 s93, 0")
    A("L_hspin:")
    A("  ds_read_b32 v5, v1")
    A("  s_waitcnt lgkmcnt(0)")
    A("  v_readfirstlane_b32 s10, v5")
    A("  s_cmp_ge_u32 s10, 4")
    A("  s_cbranch_scc1 L_hgo")
    A("  s_sleep 4")
    A("  s_add_u32 s93, s93, 1"); A(f"  s_cmp_lt_u32 s93, {SPIN_MAX}")
    A("  s_cbranch_scc1 L_hspin")
    A("L_hgo:")
    A("  s_mul_i32 s11, s12, 144")
    A("  v_min_u32 v1, 35, v0")
    A("  v_lshl_add_u32 v1, v1, 2, s11")
    for k in range(12): A(f"  ds_read_b32 v{HS+k}, v1 offset:{HP+576*k}")
    A(f"  v_lshlrev_b32 {t0}, 16, v{HX+10}")
    A("  s_waitcnt lgkmcnt(0)")
    for k in range(12): A(f"  v_add_f32 {t0}, {t0}, v{HS+k}")
    k0 = math.sqrt(2 / math.pi)
    A(f"  v_mul_f32 {t1}, {t0}, {t0}")
    A(f"  v_mov_b32 v{T+2}, {f2u(-2*k0*math.log2(math.e))}")
    A(f"  v_fmac_f32 v{T+2}, {f2u(-2*k0*0.044715*math.log2(math.e))}, {t1}")
    A(f"  v_mul_f32 v{T+2}, v{T+2}, {t0}")
    A(f"  v_exp_f32 v{T+2}, v{T+2}")
    A(f"  v_add_f32 v{T+2}, 1.0, v{T+2}")
    A(f"  v_rcp_f32 v{T+2}, v{T+2}")
    A(f"  v_mul_f32 {t0}, {t0}, v{T+2}")
    A(f"  v_mul_f32 {t0}, {v1mG}, {t0}")
    A("  v_cmp_gt_u32 vcc, 36, v0")
    A(f"  v_cndmask_b32 {vZ}, 0, {t0}, vcc")
    if dbg:
        A("  s_lshl_b32 s7, s6, 2"); A("  s_add_u32 s7, s7, s12"); A("  s_lshl_b32 s7, s7, 8"); A("  s_add_u32 s7, s7, 0x32000000")
        A("  v_lshlrev_b32 v1, 2, v0")
        A(f"  buffer_store_dword {vZ}, v1, {WS}, s7 offen")
        A("  s_waitcnt vmcnt(0)")
    A("  s_mul_i32 s10, s4, 144"); A("  s_mul_i32 s11, s12, 36"); A("  s_add_u32 s10, s10, s11"); A("  s_mul_i32 s10, s10, 1152")
    A("  s_add_u32 s72, s32, s10"); A("  s_addc_u32 s73, s33, 0"); A(f"  s_mov_b32 s74, {36*1152}"); A("  s_mov_b32 s75, 0x20000")
    A("  s_mov_b32 s10, 0")
    for u in range(H2):
        A(f"  buffer_load_dwordx4 {hring(u)}, v2, {W2}, s10 offen {wflags}")
        A("  s_addk_i32 s10, %d" % (0 if hfake else 1152))
    A("  s_mov_b32 s11, 0")
    A("L_w2:")
    for u in range(H2):
        A(f"  v_readlane_b32 s7, {vZ}, s11")
        A("  s_add_u32 s11, s11, 1")
        A(f"  s_waitcnt vmcnt({H2-1})")
        unpack(HRING + 4 * u)
        A(f"  buffer_load_dwordx4 {hring(u)}, v2, {W2}, s10 offen {wflags}")
        A("  s_addk_i32 s10, %d" % (0 if hfake else 1152))
        for k in range(8): A(f"  v_fmac_f32 v{OA+k}, s7, v{T+k}")
    A("  s_cmp_lt_u32 s11, 36")
    A("  s_cbranch_scc1 L_w2")
    stamp(STH, 1)
    A("  v_lshrrev_b32 v5, 3, v0"); A("  v_mul_u32_u24 v6, 1152, v5")
    A("  v_and_b32 v1, 7, v0"); A("  v_lshl_add_u32 v6, v1, 4, v6")
    A("  s_mov_b32 s10, 0")
    for e in range(5):
        A(f"  buffer_load_dwordx4 {wt(e)}, v6, {W2}, s10 offen offset:1024 {wflags}")
        A(f"  s_addk_i32 s10, {8*1152}")
    A("  v_lshlrev_b32 v5, 2, v5")
    for e in range(5):
        A(f"  ds_bpermute_b32 v{HS+e}, v5, {vZ}")
        A("  v_add_u32 v5, 32, v5")
    A("  s_waitcnt lgkmcnt(0)")
    for e in range(5):
        A(f"  s_waitcnt vmcnt({4-e})")
        unpack(WT + 4 * e)
        for k in range(8): A(f"  v_fmac_f32 v{OA+8+k}, v{HS+e}, v{T+k}")
    A("  s_lshl_b32 s10, s4, 7"); A("  s_lshl_b32 s11, s12, 5"); A("  s_add_u32 s10, s10, s11"); A("  s_mul_i32 s10, s10, 1152")
    A("  v_lshrrev_b32 v5, 3, v0"); A("  v_mul_u32_u24 v5, 2304, v5")
    A("  v_and_b32 v1, 7, v0"); A("  v_lshl_add_u32 v5, v1, 4, v5")
    for e in range(2):
        for par in range(2):
            A(f"  buffer_load_dwordx4 {wt(32+2*e+par)}, v5, {WO}, s10 offen offset:{1024+1152*par} {wflags}")
        if e == 0: A(f"  s_add_u32 s11, s10, {16*1152}"); A("  s_mov_b32 s7, s10"); A("  s_mov_b32 s10, s11")
    A("  s_mov_b32 s10, s7")
    for r in range(32):
        A(f"  s_waitcnt vmcnt({HWO-1})")
        A(f"  buffer_load_dwordx4 {wt(r)}, v2, {WO}, s10 offen {wflags}")
        A("  s_addk_i32 s10, %d" % (0 if hfake else 1152))
    A("L_rdy0:")
    A("  s_mov_b32 s10, 0x05040100"); A("  s_mov_b32 s11, 0x07060302")
    A("  s_waitcnt vmcnt(0)")
    for k in range(18):
        for i in range(4):
            a_, b_ = WT + 8 * k + i, WT + 8 * k + 4 + i
            tmp = T + (i % 4)
            A(f"  v_perm_b32 v{tmp}, v{b_}, v{a_}, s10")
            A(f"  v_perm_b32 v{b_}, v{b_}, v{a_}, s11")
            A(f"  v_mov_b32 v{a_}, v{tmp}")
    A("  s_lshl_b32 s7, s12, 7")
    A("  v_lshlrev_b32 v1, 9, v3"); A("  v_lshl_add_u32 v1, v4, 2, v1"); A("  v_add_u32 v1, s7, v1")
    A("  v_mov_b32 v5, 0")
    A("  v_lshlrev_b32 v6, 3, v3")
    A("  v_lshrrev_b32 v7, 3, v0"); A("  v_lshlrev_b32 v7, 3, v7")
    A("  s_mul_i32 s9, s12, 2304")
    A("  v_lshl_add_u32 v8, v0, 5, s9")
    A("  v_and_b32 v9, 7, v0"); A("  v_lshlrev_b32 v9, 3, v9")
    A("  v_bfe_u32 v10, v0, 3, 1"); A("  v_add_u32 v9, v9, v10"); A("  v_lshl_add_u32 v9, v3, 1, v9")
    A("  v_lshl_add_u32 v9, v9, 2, s9")
    A("  s_barrier")
    if stamps:
        A("  s_memrealtime s[100:101]"); A("  s_waitcnt lgkmcnt(0)")
    A(f"  ds_read_b32 v{T}, v1 offset:{OP}")
    A(f"  ds_read_b32 v{T+4}, v1 offset:{OP+64}")
    A(f"  ds_read_b128 v[{HS}:{HS+3}], v5 offset:{ML}")
    A(f"  ds_read_b128 v[{HS+4}:{HS+7}], v5 offset:{ML+16}")
    A(f"  ds_read_b32 v{T+1}, v6 offset:{ML}")
    A("  s_waitcnt lgkmcnt(0)")
    m0, l0, m1, l1, m2, l2, m3, l3 = [f"v{HS+i}" for i in range(8)]
    A(f"  v_max3_f32 v{T+2}, {m0}, {m1}, {m2}"); A(f"  v_max_f32 v{T+2}, v{T+2}, {m3}")
    for mm in (m0, m1, m2, m3, f"v{T+1}"): A(f"  v_sub_f32 {mm}, {mm}, v{T+2}")
    for mm in (m0, m1, m2, m3, f"v{T+1}"): A(f"  v_exp_f32 {mm}, {mm}")
    A(f"  v_mul_f32 v{T+3}, {m0}, {l0}")
    A(f"  v_fmac_f32 v{T+3}, {m1}, {l1}"); A(f"  v_fmac_f32 v{T+3}, {m2}, {l2}"); A(f"  v_fmac_f32 v{T+3}, {m3}, {l3}")
    A(f"  v_rcp_f32 v{T+3}, v{T+3}")
    A(f"  v_mul_f32 v{T}, v{T}, v{T+1}"); A(f"  v_mul_f32 v{T+4}, v{T+4}, v{T+1}")
    A(f"  v_mul_f32 v{T+3}, v{T+3}, {vG_}")
    A(f"  v_permlane32_swap_b32 v{T}, v{T+4}")
    A(f"  v_add_f32 v{T}, v{T}, v{T+4}")
    A(f"  v_mov_b32 v{T+1}, v{T}"); A(f"  v_permlane16_swap_b32 v{T}, v{T+1}"); A(f"  v_add_f32 v{T}, v{T}, v{T+1}")
    A(f"  v_mul_f32 v{T}, v{T}, v{T+3}")
    if dbg:
        A("  s_lshl_b32 s7, s6, 2"); A("  s_add_u32 s7, s7, s12"); A("  s_lshl_b32 s7, s7, 8"); A("  s_add_u32 s7, s7, 0x33000000")
        A("  v_lshlrev_b32 v1, 2, v0")
        A(f"  buffer_store_dword v{T}, v1, {WS}, s7 offen")
        A("  s_waitcnt vmcnt(0)")
    A(f"  v_mov_b32_dpp v{T+1}, v{T} quad_perm:[1,0,3,2] row_mask:0xf bank_mask:0xf")
    A(f"  v_cvt_pk_bf16_f32 v{T}, v{T}, v{T+1}")
    A(f"  ds_bpermute_b32 v{T+2}, v7, v{T}")
    A("  v_add_u32 v7, 128, v7")
    A(f"  ds_bpermute_b32 v{T+3}, v7, v{T}")
    ZS = 60
    for k in range(16): A(f"  v_readlane_b32 s{ZS+k}, v{T}, {2*k if k < 8 else 32 + 2*(k-8)}")
    for k in range(16):
        for i in range(4):
            A(f"  v_dot2c_f32_bf16 v{OA+2*i}, s{ZS+k}, v{WT+8*k+i}")
            A(f"  v_dot2c_f32_bf16 v{OA+2*i+1}, s{ZS+k}, v{WT+8*k+4+i}")
    A(f"  ds_write_b128 v8, v[{OA}:{OA+3}] offset:{OUTP}")
    A(f"  ds_write_b128 v8, v[{OA+4}:{OA+7}] offset:{OUTP+16}")
    A("  s_waitcnt lgkmcnt(2)")
    for e in range(2):
        for i in range(4):
            A(f"  v_dot2c_f32_bf16 v{OA+8+2*i}, v{T+2+e}, v{WT+128+8*e+i}")
            A(f"  v_dot2c_f32_bf16 v{OA+8+2*i+1}, v{T+2+e}, v{WT+128+8*e+4+i}")
    E = OA + 8
    for j in range(4): A(f"  v_permlane32_swap_b32 v{E+j}, v{E+j+4}")
    for j in range(4): A(f"  v_add_f32 v{E+j}, v{E+j}, v{E+j+4}")
    for j in range(2): A(f"  v_permlane16_swap_b32 v{E+j}, v{E+j+2}")
    for j in range(2): A(f"  v_add_f32 v{E+j}, v{E+j}, v{E+j+2}")
    A(f"  v_add_f32_dpp v{E}, v{E}, v{E} row_ror:8 row_mask:0xf bank_mask:0x3")
    A(f"  v_add_f32_dpp v{E}, v{E+1}, v{E+1} row_ror:8 row_mask:0xf bank_mask:0xc")
    A(f"  ds_write_b32 v9, v{E} offset:{OUTP+2048}")
    A("  s_waitcnt lgkmcnt(0)")
    A("  s_barrier")

    A("L_final:")
    if stamps:
        A("  s_cmp_lg_u32 s3, 0"); A("  s_cbranch_scc1 L_nst6")
        stamp(STR, 6)
        A("L_nst6:")
    F = 24
    A("  s_mov_b32 s84, s42"); A("  s_mov_b32 s85, s43"); A("  s_mov_b32 s86, 0x40000000"); A("  s_mov_b32 s87, 0x20000")
    A("  s_mul_i32 s7, s3, 288")
    A("  v_lshl_add_u32 v1, v0, 3, s7")
    A("  s_mov_b32 exec_lo, -1"); A("  s_mov_b32 exec_hi, 15")
    for w in range(4): A(f"  ds_read_b64 v[{F+2*w}:{F+2*w+1}], v1 offset:{OUTP+2304*w}")
    A("  v_mul_u32_u24 v5, 57, v0"); A("  v_lshrrev_b32 v5, 9, v5")
    A("  v_mul_u32_u24 v6, 9, v5"); A("  v_sub_u32 v6, v0, v6")
    A(f"  v_mul_u32_u24 v5, {INBOX_STRIDE}, v5"); A("  v_lshl_add_u32 v5, v6, 4, v5")
    A("  s_lshl_b32 s7, s5, 5"); A("  s_lshl_b32 s10, s3, 2"); A("  s_add_u32 s7, s7, s10"); A(f"  s_mul_i32 s7, s7, {INBOX_STRIDE}")
    A("  s_mul_i32 s10, s4, 144"); A("  s_add_u32 s7, s7, s10")
    A("  s_add_u32 s26, s26, 1"); A("  s_not_b32 s27, s26")
    A(f"  v_mov_b32 v{F+9}, s26"); A(f"  v_mov_b32 v{F+11}, s27")
    A("  s_waitcnt lgkmcnt(0)")
    A(f"  v_add_f32 v{F}, v{F}, v{F+2}"); A(f"  v_add_f32 v{F+1}, v{F+1}, v{F+3}")
    A(f"  v_add_f32 v{F+4}, v{F+4}, v{F+6}"); A(f"  v_add_f32 v{F+5}, v{F+5}, v{F+7}")
    A(f"  v_add_f32 v{F+8}, v{F}, v{F+4}"); A(f"  v_add_f32 v{F+10}, v{F+1}, v{F+5}")
    A(f"  buffer_store_dwordx4 v[{F+8}:{F+11}], v5, {WS}, s7 offen sc1")
    A("  s_cmp_lg_u32 s3, 0")
    A("  s_cbranch_scc1 L_fin")
    stamp(STR, 7)
    A("  s_mov_b64 exec, -1")
    A("  v_mul_u32_u24 v5, 144, v3"); A("  v_lshl_add_u32 v5, v4, 4, v5")
    A(f"  s_mul_i32 s7, s6, {INBOX_STRIDE}")
    A("  v_cmp_gt_u32 vcc, 9, v4")
    PDS = [16, 18, 20, 22, 24, 28, 30, 32]
    pd = lambda k: f"s[{PDS[k]}:{PDS[k]+1}]"
    for k in range(8): A(f"  s_mov_b64 {pd(k)}, vcc")
    A("  s_mov_b32 s80, s34"); A("  s_mov_b32 s81, s35"); A("  s_mov_b32 s82, 1152"); A("  s_mov_b32 s83, 0x20000")
    A("  s_mul_i32 s11, s4, 36")
    A("  v_lshlrev_b32 v1, 2, v4")
    A(f"  buffer_load_dword v10, v1, {B2}, s11 offen")
    A(f"  v_mov_b32 v6, {GATE}"); A("  ds_read_b32 v8, v6")
    A("  s_mov_b32 s88, s38"); A("  s_mov_b32 s89, s39"); A("  s_mov_b32 s90, 9216"); A("  s_mov_b32 s91, 0x20000")
    G = 40
    A("  s_mov_b32 s93, 0")
    A("L_poll:")
    for k in range(8):
        A(f"  s_mov_b64 exec, {pd(k)}")
        A(f"  s_cbranch_execz L_sk{k}")
        A(f"  buffer_load_dwordx4 v[{G+4*k}:{G+4*k+3}], v5, {WS}, s7 offen offset:{576*k} sc1")
        A(f"L_sk{k}:")
    A("  s_waitcnt vmcnt(0)")
    A("  s_mov_b64 s[10:11], 0")
    for k in range(8):
        A(f"  s_mov_b64 exec, {pd(k)}")
        A(f"  v_xor_b32 v{T}, s26, v{G+4*k+1}"); A(f"  v_xor_b32 v{T+1}, s27, v{G+4*k+3}"); A(f"  v_or_b32 v{T}, v{T}, v{T+1}")
        A(f"  v_cmp_ne_u32 {pd(k)}, 0, v{T}")
        A(f"  s_and_b64 {pd(k)}, {pd(k)}, exec")
        A(f"  s_or_b64 s[10:11], s[10:11], {pd(k)}")
    A("  s_cmp_eq_u64 s[10:11], 0")
    A("  s_cbranch_scc1 L_pdone")
    if poll_sleep: A(f"  s_sleep {poll_sleep}")
    A("  s_add_u32 s93, s93, 1"); A(f"  s_cmp_lt_u32 s93, {SPIN_MAX}")
    A("  s_cbranch_scc1 L_poll")
    A("L_pdone:")
    stamp(STR, 8)
    A("  s_mov_b64 exec, -1")
    for k in range(1, 8):
        A(f"  v_add_f32 v{G}, v{G}, v{G+4*k}"); A(f"  v_add_f32 v{G+2}, v{G+2}, v{G+4*k+2}")
    A(f"  v_permlane32_swap_b32 v{G}, v{G+2}")
    A(f"  v_add_f32 v{G}, v{G}, v{G+2}")
    A(f"  v_mov_b32 v{T}, v{G}"); A(f"  v_permlane16_swap_b32 v{G}, v{T}"); A(f"  v_add_f32 v{G}, v{G}, v{T}")
    A(f"  v_mov_b32 v{T}, v{G}"); A(f"  v_permlane32_swap_b32 v{G}, v{T}")
    A("  s_waitcnt lgkmcnt(0)")
    A("  v_sub_f32 v8, 1.0, v8")
    A(f"  v_lshlrev_b32 v{T+1}, 16, v10"); A(f"  v_and_b32 v{T+2}, {sMASK}, v10")
    A(f"  v_fmac_f32 v{G}, v8, v{T+1}"); A(f"  v_fmac_f32 v{T}, v8, v{T+2}")
    A(f"  v_cvt_pk_bf16_f32 v{G}, v{G}, v{T}")
    A("  s_mul_i32 s7, s5, 1152"); A("  s_mul_i32 s12, s4, 36"); A("  s_add_u32 s7, s7, s12")
    A("  s_mov_b64 exec, 0x1ff")
    A(f"  buffer_store_dword v{G}, v1, {OUT}, s7 offen")
    A("  s_cmp_lg_u32 s4, 0"); A("  s_cbranch_scc1 L_fin")
    A("  s_mov_b64 exec, 1")
    A("  s_lshl_b32 s7, s5, 7"); A(f"  s_add_u32 s7, s7, {EPOCH_OFF}")
    A("  v_mov_b32 v5, s26"); A("  v_mov_b32 v6, 0")
    A(f"  buffer_store_dword v5, v6, {WS}, s7 offen")
    A("L_fin:")
    if stamps:
        A("  s_mov_b64 exec, 1")
        A("  s_memrealtime s[12:13]")
        A("  s_waitcnt lgkmcnt(0) vmcnt(0)")
        A("  s_and_b32 s7, s3, 3"); A("  s_cmp_lg_u32 s7, 0"); A("  s_cbranch_scc1 L_end")
        A("  s_lshl_b32 s7, s2, 8"); A("  s_add_u32 s7, s7, 0x20000000")
        A("  s_lshl_b32 s10, s3, 5"); A("  s_add_u32 s7, s7, s10")
        A("  v_mov_b32 v1, 0")
        A("  v_mov_b32 v4, s98"); A("  v_mov_b32 v5, s99"); A("  v_mov_b32 v6, s12"); A("  v_mov_b32 v7, s13")
        A(f"  buffer_store_dwordx4 v[4:7], v1, {WS}, s7 offen")
        A("  s_getreg_b32 s13, hwreg(HW_REG_XCC_ID)")
        A("  v_mov_b32 v8, s13"); A("  v_mov_b32 v9, 0"); A("  v_mov_b32 v10, s100"); A("  v_mov_b32 v11, s101")
        A(f"  buffer_store_dwordx4 v[8:11], v1, {WS}, s7 offen offset:16")
        A("  s_cmp_lg_u32 s3, 0"); A("  s_cbranch_scc1 L_sth")
        for i, r in enumerate(STR):
            A(f"  v_mov_b32 v12, s{r}"); A(f"  v_mov_b32 v13, s{r+1}")
            A(f"  buffer_store_dwordx2 v[12:13], v1, {WS}, s7 offen offset:{32+8*i}")
            A("  s_nop 1")
        A("  s_branch L_end")
        A("L_sth:")
        for i, r in enumerate(STH[:4]):
            A(f"  v_mov_b32 v12, s{r}"); A(f"  v_mov_b32 v13, s{r+1}")
            A(f"  buffer_store_dwordx2 v[12:13], v1, {WS}, s7 offen offset:{32+8*i}")
            A("  s_nop 1")
    A("L_end:")
    A("  s_endpgm")
    A('.section .rodata,"a"'); A(".p2align 6"); A(f".amdhsa_kernel {KN}")
    A("  .amdhsa_next_free_vgpr 256"); A("  .amdhsa_next_free_sgpr 102"); A("  .amdhsa_accum_offset 256")
    A("  .amdhsa_group_segment_fixed_size 0"); A("  .amdhsa_kernarg_size 112"); A("  .amdhsa_user_sgpr_count 2")
    A("  .amdhsa_user_sgpr_kernarg_segment_ptr 1"); A("  .amdhsa_system_sgpr_workgroup_id_x 1"); A(".end_amdhsa_kernel")
    return A.fix()

if __name__ == "__main__":
    import argparse
    ap = argparse.ArgumentParser()
    ap.add_argument("-o", default="k.s")
    for n, d in [("R", 5), ("HRW", 2), ("H2", 2), ("HWO", 4), ("RB", 0), ("NB", 0), ("EK", 1), ("EBAR", 4), ("poll_sleep", 2), ("adapt", 0), ("pf", 0), ("WQW", 16), ("touch", 0), ("map2", 0), ("noproto", 0), ("theta", 1), ("csleep", 8), ("pstop", 28)]:
        ap.add_argument("--" + n, type=int, default=d)
    ap.add_argument("--stamps", action="store_true"); ap.add_argument("--dbg", action="store_true"); ap.add_argument("--prio", action="store_true"); ap.add_argument("--norot", action="store_true"); ap.add_argument("--hfake", action="store_true"); ap.add_argument("--skiph", action="store_true")
    ap.add_argument("--wflags", default=""); ap.add_argument("--pfflags", default=""); ap.add_argument("--kflags", default="nt"); ap.add_argument("--vflags", default="nt")
    a = ap.parse_args()
    kw = vars(a).copy(); o = kw.pop("o"); kw["rot"] = not kw.pop("norot")
    if kw["RB"] == 0: kw["RB"] = None
    open(o, "w").write(gen(**kw))
    print("wrote", o)
```
